```python
import torch

def _softmax(x, axis=-1):
    return torch.softmax(x, dim=axis)
def _gelu(x):
    return torch.nn.functional.gelu(x, approximate="tanh")
def _silu(x):
    return torch.nn.functional.silu(x)
def _sigmoid(x):
    return torch.sigmoid(x)
def _layernorm(x, axis=-1, eps=1e-5):
    m = x.mean(dim=axis, keepdim=True)
    v = x.var(dim=axis, keepdim=True, unbiased=False)
    return (x - m) / torch.sqrt(v + eps)
def _scatter_add(tgt, idx, src, axis=0):
    return tgt.clone().index_add_(axis, idx, src)
def _segment_sum(src, seg, n):
    out = torch.zeros((n,) + src.shape[1:], dtype=src.dtype)
    return out.index_add_(0, seg, src)
def _pad(x, pw):
    flat = tuple(v for pair in reversed(pw) for v in pair)
    return torch.nn.functional.pad(x, flat)

kernel_name = 'sequential_preLN__mha_block__dense_activation_gelu__prompt'

def setup_inputs():

    _w = (lambda a: (lambda t: t.to(torch.bfloat16) if t.is_floating_point() else t)(torch.as_tensor(a)))
    def _A_setup():
        B, S, D, H = 1, 2048, 448, 16
        return {
            "x": _w((lambda *s: torch.randn(*s, dtype=torch.bfloat16) * 0.05)(B, S, D)),
            "wqkv": _w((lambda *s: torch.randn(*s, dtype=torch.bfloat16) * 0.05)(D, 3 * D)),
            "wo": _w((lambda *s: torch.randn(*s, dtype=torch.bfloat16) * 0.05)(D, D)),
        }
    _A_in = _A_setup()

    def _B_setup():
        B, S, D, F = 1, 2048, 448, 1792
        return {
            "x": _w((lambda *s: torch.randn(*s, dtype=torch.bfloat16) * 0.05)(B, S, D)),
            "w1": _w((lambda *s: torch.randn(*s, dtype=torch.bfloat16) * 0.8)(D, F) * (D ** -0.5)),
            "b1": _w((lambda *s: torch.randn(*s, dtype=torch.bfloat16) * 12.8)(F) * 0.01),
            "w2": _w((lambda *s: torch.randn(*s, dtype=torch.bfloat16) * 0.8)(F, D) * (F ** -0.5)),
            "b2": _w((lambda *s: torch.randn(*s, dtype=torch.bfloat16) * 12.8)(D) * 0.01),
        }
    _B_in = _B_setup()

    return {
        "A_x": _A_in["x"],
        "A_wqkv": _A_in["wqkv"],
        "A_wo": _A_in["wo"],
        "B_x": _B_in["x"],
        "B_w1": _B_in["w1"],
        "B_b1": _B_in["b1"],
        "B_w2": _B_in["w2"],
        "B_b2": _B_in["b2"],
    }

def reference(A_x, A_wqkv, A_wo, B_x, B_w1, B_b1, B_w2, B_b2):
    def _A_ref(x, wqkv, wo):
        B, S, D = x.shape
        H = 16
        Dh = D // H
        qkv = (lambda x, *d: x.permute(*d))((x @ wqkv).reshape(B, S, 3, H, Dh), 2, 0, 3, 1, 4)
        q, k, v = qkv[0], qkv[1], qkv[2]
        scores = torch.einsum("bhqd,bhkd->bhqk", q, k) * (Dh ** -0.5)
        p = _softmax(scores, axis=-1)
        o = torch.einsum("bhqk,bhkd->bhqd", p, v)
        return (lambda x, *d: x.permute(*d))(o, 0, 2, 1, 3).reshape(B, S, D) @ wo

    def _B_ref(x, w1, b1, w2, b2):
        h = torch.einsum("bsd,df->bsf", x, w1) + b1
        h = _gelu(h)
        return torch.einsum("bsf,fd->bsd", h, w2) + b2

    x = A_x
    h = x + _A_ref(_layernorm(x, axis=-1), A_wqkv, A_wo)
    h2 = h + _B_ref(_layernorm(h, axis=-1), B_w1, B_b1, B_w2, B_b2)
    return h2
```

```python
from common import *

def attn():
    name = 'k2_attn_kernel'
    k = K(name)
    Q, O, S, P, KB, VB, M = 16, 48, 112, 144, 160, 192, 224
    k(f'''s_cmp_ge_u32 s2, 256
    s_cbranch_scc1 {name}_end
    s_load_dwordx2 s[8:9], s[0:1], {ARG['ws']}
    v_lshrrev_b32 v1, 6, v0
    v_mov_b32 v15, v0
    v_and_b32 v0, 63, v0
    s_and_b32 s35, s2, 7
    s_lshr_b32 s36, s2, 3
    v_readfirstlane_b32 s33, v1
    s_lshr_b32 s37, s36, 4
    s_lshl_b32 s31, s35, 1
    s_add_u32 s31, s31, s37
    s_and_b32 s32, s36, 15
    v_lshlrev_b32 v2, 4, v0
    s_lshl_b32 s38, s31, 17
    s_lshl_b32 s39, s32, 13
    s_add_u32 s39, s39, s38
    s_lshl_b32 s40, s33, 15
    s_add_u32 s40, s40, s38
    s_mov_b32 s42, 0x0fffffff
    s_mov_b32 s43, 0x0fffffff
    v_cmp_gt_u32 vcc, 32, v0
    v_cndmask_b32 v3, 0, -1, vcc
    s_mov_b32 s47, 0
    s_waitcnt lgkmcnt(0)''')
    k.srd(12, 8, 0x200000, QF)
    k.srd(16, 8, 0x200000, KF)
    k.srd(20, 8, 0x200000, VF)
    k.srd(24, 8, 128*14336, OF)
    for c in range(4):
        for m in range(2):
            if c == 2 and m == 0: k('s_add_u32 s39, s39, 4096')
            k(f'buffer_load_dwordx4 v[{Q+(c*2+m)*4}:{Q+(c*2+m)*4+3}], v2, s[12:15], s39 offen offset:{(c&1)*2048+m*1024}')
    for i in range(32): k(f'v_mov_b32 v{VB+i}, 0x3f803f80')
    def kv(buf, sreg):
        return [f'buffer_load_dwordx4 v[{KB+buf*8}:{KB+buf*8+3}], v2, s[16:19], {sreg} offen',
                f'buffer_load_dwordx4 v[{KB+buf*8+4}:{KB+buf*8+7}], v2, s[16:19], {sreg} offen offset:1024',
                's_mov_b64 exec, s[42:43]',
                f'buffer_load_dwordx4 v[{VB+buf*8}:{VB+buf*8+3}], v2, s[20:23], {sreg} offen',
                f'buffer_load_dwordx4 v[{VB+buf*8+4}:{VB+buf*8+7}], v2, s[20:23], {sreg} offen offset:1024',
                's_mov_b64 exec, -1']
    k('s_mov_b32 s41, s40')
    for j in range(3):
        k('\n'.join(kv(j, 's41')))
        k('s_add_u32 s41, s41, 2048')
    for i in range(64): k(f'v_mov_b32 v{O+i}, 0')
    for i in range(16): k(f'v_mov_b32 v{P+i}, 0')
    def kmask(buf): return [f'v_and_b32 v{KB+buf*8+6}, v3, v{KB+buf*8+6}', f'v_and_b32 v{KB+buf*8+7}, v3, v{KB+buf*8+7}']
    def qk(buf, c, sb):
        d = f'v[{S+sb*16}:{S+sb*16+15}]'
        return [f'v_mfma_f32_32x32x16_bf16 {d}, v[{KB+buf*8}:{KB+buf*8+3}], v[{Q+c*8}:{Q+c*8+3}], 0',
                f'v_mfma_f32_32x32x16_bf16 {d}, v[{KB+buf*8+4}:{KB+buf*8+7}], v[{Q+c*8+4}:{Q+c*8+7}], {d}']
    def pv(buf, c, pb):
        d = f'v[{O+c*16}:{O+c*16+15}]'
        return [f'v_mfma_f32_32x32x16_bf16 {d}, v[{VB+buf*8}:{VB+buf*8+3}], v[{P+pb*8}:{P+pb*8+3}], {d}',
                f'v_mfma_f32_32x32x16_bf16 {d}, v[{VB+buf*8+4}:{VB+buf*8+7}], v[{P+pb*8+4}:{P+pb*8+7}], {d}']
    k('s_waitcnt vmcnt(8)')
    for c in range(4):
        k(f'v_and_b32 v{Q+c*8+6}, v3, v{Q+c*8+6}\nv_and_b32 v{Q+c*8+7}, v3, v{Q+c*8+7}')
    k('\n'.join(kmask(0)))
    k('s_nop 1')
    k('\n'.join(qk(0, 0, 0)))
    k('s_mov_b32 s44, 0\ns_nop 7\ns_nop 3')
    k.label(f'{name}_loop')
    for jj in range(4):
        for c in range(4):
            sb = c & 1
            nb = (jj + (c == 3)) % 4
            pre = []
            if c == 3: pre = ['s_waitcnt vmcnt(8)'] + kmask(nb)
            a = qk(nb, (c+1) & 3, 1-sb)
            b = pv((jj - (c == 0)) % 4, (c-1) & 3, 1-sb)
            ex = [f'v_exp_f32 v{S+sb*16+i}, v{S+sb*16+i}' for i in range(16)]
            cv = [f'v_cvt_pk_bf16_f32 v{P+sb*8+i}, v{S+sb*16+2*i}, v{S+sb*16+2*i+1}' for i in range(8)]
            seq = pre + ex[0:2] + [a[0]] + ex[2:7] + [cv[0], cv[1], a[1]] + ex[7:11] + [cv[2], cv[3], cv[4], b[0]] + ex[11:16] + [cv[5], cv[6], b[1], cv[7]]
            if c == 1:
                seq = seq[:3] + kv((jj+3) % 4, 's41') + ['s_add_u32 s41, s41, 2048'] + seq[3:]
            k('\n'.join(seq))
    k(f'''s_add_u32 s44, s44, 1
    s_cmp_lt_u32 s44, 4
    s_cbranch_scc1 {name}_loop
    s_nop 1''')
    k('\n'.join(pv(3, 3, 1)))
    k.label(f'{name}_comb')
    k(f'''v_lshrrev_b32 v4, 5, v0
    v_and_b32 v5, 31, v0
    v_lshlrev_b32 v4, 11, v4
    v_lshl_add_u32 v4, v5, 4, v4
    s_lshl_b32 s45, s33, 14
    v_add_u32 v4, s45, v4
    s_nop 7
    s_nop 7''')
    for c in range(4):
        for j in range(4):
            k(f'ds_write_b128 v4, v[{O+c*16+4*j}:{O+c*16+4*j+3}] offset:{j*4096+c*512}')
    k(f'''v_and_b32 v5, 127, v15
    v_lshlrev_b32 v6, 4, v5
    v_xor_b32 v7, 1024, v6
    s_waitcnt lgkmcnt(0)
    s_barrier''')
    for w in range(4):
        k(f'ds_read_b32 v{8+w}, v6 offset:{w*16384+7*2048}')
    for w in range(4):
        k(f'ds_read_b32 v{S+w}, v7 offset:{w*16384+7*2048}')
    k(f'''s_lshr_b32 s46, s33, 1
    s_lshl_b32 s45, s46, 11
    v_add_u32 v6, s45, v6''')
    for i in range(4):
        for w in range(4):
            r = KB + (i*4+w)*4
            k(f'ds_read_b128 v[{r}:{r+3}], v6 offset:{w*16384+i*4096}')
        if i == 0: k('s_waitcnt lgkmcnt(4)')
        if i == 2: k('s_waitcnt lgkmcnt(8)')
    k(f'''v_add_f32 v8, v8, v9
    v_add_f32 v10, v10, v11
    v_add_f32 v{S}, v{S}, v{S+1}
    v_add_f32 v{S+2}, v{S+2}, v{S+3}
    v_add_f32 v8, v8, v10
    v_add_f32 v{S}, v{S}, v{S+2}
    s_cmp_lg_u32 s47, 0
    s_cbranch_scc1 {name}_ok
    v_mov_b32 v9, {hex(f2u(2.0**-60))}
    v_mov_b32 v10, {hex(f2u(2.0**60))}
    v_cmp_ge_f32 s[48:49], v8, v9
    v_cmp_le_f32 s[50:51], v8, v10
    v_cmp_ge_f32 s[52:53], v{S}, v9
    v_cmp_le_f32 s[54:55], v{S}, v10
    s_and_b64 s[48:49], s[48:49], s[50:51]
    s_and_b64 s[52:53], s[52:53], s[54:55]
    s_and_b64 s[48:49], s[48:49], s[52:53]
    s_cmp_eq_u64 s[48:49], -1
    s_cbranch_scc0 {name}_slow''')
    k.label(f'{name}_ok')
    k(f'''v_rcp_f32 v8, v8
    v_lshrrev_b32 v9, 4, v5
    v_mul_u32_u24 v9, 14336, v9
    v_and_b32 v10, 15, v5
    v_lshl_add_u32 v9, v10, 4, v9
    s_mul_i32 s48, s32, {8*14336}
    s_mul_i32 s49, s31, 7
    s_add_u32 s49, s49, s46
    s_waitcnt lgkmcnt(0)''')
    for i in range(4):
        if i == 3: k(f's_cmp_eq_u32 s46, 1\ns_cbranch_scc1 {name}_end')
        r = KB + i*16
        k(f'''v_pk_add_f32 v[{r}:{r+1}], v[{r}:{r+1}], v[{r+4}:{r+5}]
        v_pk_add_f32 v[{r+2}:{r+3}], v[{r+2}:{r+3}], v[{r+6}:{r+7}]
        v_pk_add_f32 v[{r+8}:{r+9}], v[{r+8}:{r+9}], v[{r+12}:{r+13}]
        v_pk_add_f32 v[{r+10}:{r+11}], v[{r+10}:{r+11}], v[{r+14}:{r+15}]
        v_pk_add_f32 v[{r}:{r+1}], v[{r}:{r+1}], v[{r+8}:{r+9}]
        v_pk_add_f32 v[{r+2}:{r+3}], v[{r+2}:{r+3}], v[{r+10}:{r+11}]
        v_mul_f32 v{r}, v8, v{r}
        v_mul_f32 v{r+1}, v8, v{r+1}
        v_mul_f32 v{r+2}, v8, v{r+2}
        v_mul_f32 v{r+3}, v8, v{r+3}
        v_cvt_pk_bf16_f32 v{r+4}, v{r}, v{r+1}
        v_cvt_pk_bf16_f32 v{r+5}, v{r+2}, v{r+3}
        s_lshr_b32 s50, s49, 3
        s_lshl_b32 s50, s50, 10
        s_bfe_u32 s51, s49, 0x20001
        s_lshl_b32 s51, s51, 8
        s_and_b32 s52, s49, 1
        s_lshl_b32 s52, s52, 3
        s_add_u32 s50, s50, s51
        s_add_u32 s50, s50, s52
        s_add_u32 s50, s50, s48
        buffer_store_dwordx2 v[{r+4}:{r+5}], v9, s[24:27], s50 offen
        s_add_u32 s49, s49, 2''')
    k('s_endpgm')
    k.label(f'{name}_slow')
    k('s_waitcnt lgkmcnt(0) vmcnt(0)\ns_barrier\ns_mov_b32 s47, 1\ns_mov_b32 s41, s40\ns_mov_b32 s44, 0')
    for i in range(64): k(f'v_mov_b32 v{O+i}, 0')
    for i in range(32): k(f'v_mov_b32 v{VB+i}, 0x3f803f80')
    for c in range(4): k(f'v_mov_b32 v{M+c}, {hex(f2u(-3.0e38))}')
    k.label(f'{name}_sloop')
    k('\n'.join(kv(0, 's41')))
    k('s_add_u32 s41, s41, 2048\ns_waitcnt vmcnt(0)')
    k('\n'.join(kmask(0)))
    for c in range(4):
        k('s_nop 1')
        k('\n'.join(qk(0, c, 0)))
        k('s_nop 7\ns_nop 7')
        k(f'v_max_f32 v4, v{S}, v{S+1}')
        for i in range(2, 16, 2): k(f'v_max3_f32 v4, v4, v{S+i}, v{S+i+1}')
        k(f'''v_mov_b32 v5, v4
        s_nop 1
        v_permlane32_swap_b32 v5, v4
        s_nop 1
        v_max3_f32 v4, v4, v5, v{M+c}
        v_sub_f32 v5, v{M+c}, v4
        v_exp_f32 v5, v5
        v_mov_b32 v{M+c}, v4''')
        for i in range(16): k(f'v_mul_f32 v{O+c*16+i}, v5, v{O+c*16+i}')
        for i in range(16): k(f'v_sub_f32 v{S+i}, v{S+i}, v4')
        for i in range(16): k(f'v_exp_f32 v{S+i}, v{S+i}')
        k('s_nop 0')
        for i in range(8): k(f'v_cvt_pk_bf16_f32 v{P+i}, v{S+2*i}, v{S+2*i+1}')
        k('s_nop 1')
        k('\n'.join(pv(0, c, 0)))
        k('s_nop 7\ns_nop 7')
    k(f'''s_add_u32 s44, s44, 1
    s_cmp_lt_u32 s44, 16
    s_cbranch_scc1 {name}_sloop
    v_and_b32 v5, 31, v0
    v_lshlrev_b32 v5, 2, v5
    s_lshl_b32 s45, s33, 9
    v_add_u32 v4, s45, v5''')
    for c in range(4): k(f'ds_write_b32 v4, v{M+c} offset:{63488+c*128}')
    return k, name, (Q, O, S, P, KB, VB, M)

def attn_full():
    k, name, (Q, O, S, P, KB, VB, M) = attn()
    k('s_waitcnt lgkmcnt(0)\ns_barrier')
    for c in range(4):
        for w in range(4):
            k(f'ds_read_b32 v{S+c*4+w}, v5 offset:{63488+w*512+c*128}')
    k('s_waitcnt lgkmcnt(0)\ns_barrier')
    for c in range(4):
        k(f'''v_max_f32 v4, v{S+c*4}, v{S+c*4+1}
        v_max3_f32 v4, v4, v{S+c*4+2}, v{S+c*4+3}
        v_sub_f32 v4, v{M+c}, v4
        v_exp_f32 v4, v4
        s_nop 0''')
        for i in range(16): k(f'v_mul_f32 v{O+c*16+i}, v4, v{O+c*16+i}')
    k(f's_branch {name}_comb')
    k.label(f'{name}_end')
    k('s_endpgm')
    return name, header(name) + '\n' + k.text(), desc(name, 232, 0), (256, 256, 65536)
```

```python
import math
QF, KF, VF, OF, HF, GF = 0x0, 0x200000, 0x400000, 0x600000, 0x800000, 0xA00000
ARG = dict(x=0, wqkv=8, wo=16, w1=32, b1=40, w2=48, b2=56, out=64, dbg=72, ws=80)

def f2u(x):
    import struct
    return struct.unpack('<I', struct.pack('<f', x))[0]

class K:
    def __init__(s, name):
        s.name = name; s.L = []; s.nl = 0
    def __call__(s, t):
        for ln in t.split('\n'):
            ln = ln.strip()
            if ln: s.L.append('    ' + ln)
    def label(s, n): s.L.append(n + ':')
    def text(s): return '\n'.join(s.L)
    def srd(s, r, arg_s, nbytes, off=0):
        if off:
            s(f's_add_u32 s{r}, s{arg_s}, {hex(off)}')
            s(f's_addc_u32 s{r+1}, s{arg_s+1}, 0')
        else:
            s(f's_mov_b32 s{r}, s{arg_s}')
            s(f's_mov_b32 s{r+1}, s{arg_s+1}')
        s(f's_mov_b32 s{r+2}, {hex(nbytes)}')
        s(f's_mov_b32 s{r+3}, 0x00020000')

def vr(b, n=1, p='v'):
    return f'{p}{b}' if n == 1 else f'{p}[{b}:{b+n-1}]'

def header(name):
    return f'.globl {name}\n.p2align 8\n.type {name},@function\n{name}:'

def desc(name, vgpr, agpr, sgpr=96):
    acc = (vgpr + 3)//4*4
    nfv = acc + agpr if agpr else vgpr
    return f'''.p2align 6
.amdhsa_kernel {name}
  .amdhsa_next_free_vgpr {nfv}
  .amdhsa_next_free_sgpr {sgpr}
  .amdhsa_accum_offset {acc}
  .amdhsa_group_segment_fixed_size 0
  .amdhsa_kernarg_size 88
  .amdhsa_user_sgpr_count 2
  .amdhsa_user_sgpr_kernarg_segment_ptr 1
  .amdhsa_system_sgpr_workgroup_id_x 1
.end_amdhsa_kernel'''

PERM_LO, PERM_HI = 0x05040100, 0x07060302

def interleave(main, fill, per=None):
    out = []; n = len(main); m = len(fill); j = 0
    for i, a in enumerate(main):
        out.append(a)
        tgt = (i+1)*m//n if per is None else min(m, (i+1)*per)
        while j < tgt:
            out.append(fill[j]); j += 1
    out += fill[j:]
    return out

def perm_ops(raw, af, slo, shi):
    o = []
    for f in range(4):
        for j in range(4):
            a = raw + (2*j)*2 + (f >> 1); b = raw + (2*j+1)*2 + (f >> 1)
            o.append(f'v_perm_b32 v{af+4*f+j}, v{b}, v{a}, s{shi if f & 1 else slo}')
    return o
```

```python
from common import *

def ln_gemm(mode):
    qkv = mode == 'qkv'
    name = 'k1_qkv_kernel' if qkv else 'k4_ffn1_kernel'
    k = K(name)
    D = 6
    ACC, RAW, AF, VA = 64, 128, 224, 8
    RS = 2688 if qkv else 3584
    NW = 224
    k(f'''s_cmp_ge_u32 s2, {NW}
    s_cbranch_scc1 {name}_end
    s_load_dwordx2 s[4:5], s[0:1], {ARG['x']}
    s_load_dwordx2 s[6:7], s[0:1], {ARG['wqkv'] if qkv else ARG['w1']}
    s_load_dwordx2 s[8:9], s[0:1], {ARG['ws']}
    s_load_dwordx2 s[10:11], s[0:1], {ARG['b1']}
    v_lshrrev_b32 v1, 6, v0
    v_and_b32 v0, 63, v0
    s_and_b32 s35, s2, 7
    s_lshr_b32 s36, s2, 3
    v_readfirstlane_b32 s33, v1
    s_mul_i32 s37, s36, 37
    s_lshr_b32 s37, s37, 8
    s_mul_i32 s38, s37, 7
    s_sub_u32 s32, s36, s38
    s_lshl_b32 s31, s35, 2
    s_add_u32 s31, s31, s37
    s_mov_b32 s28, {hex(PERM_LO)}
    s_mov_b32 s29, {hex(PERM_HI)}''')
    k(f'''s_mul_i32 s34, s32, {3 if qkv else 4}
    s_add_u32 s34, s34, s33
    v_and_b32 v2, 15, v0
    v_lshrrev_b32 v3, 4, v0''')
    if qkv:
        k('s_min_u32 s34, s34, 20')
    k(f'''s_lshl_b32 s39, s34, 7
    v_mul_u32_u24 v4, {RS*(8 if qkv else 16)}, v3
    v_lshl_add_u32 v4, v2, 3, v4
    v_add_u32 v{VA}, s39, v4''')
    for e in range(1, 8):
        k(f'v_add_u32 v{VA+e}, {RS*e}, v{VA}')
    if qkv:
        k(f'''v_lshrrev_b32 v5, 2, v0
        v_and_b32 v6, 3, v0
        s_lshl_b32 s40, s31, 2
        s_add_u32 s40, s40, s33
        s_mul_i32 s40, s40, {16*896}
        v_mul_u32_u24 v7, 896, v5
        v_lshl_add_u32 v7, v6, 4, v7
        v_add_u32 v7, s40, v7''')
    else:
        k(f'''s_lshl_b32 s40, s31, 2
        s_add_u32 s40, s40, s33
        s_mul_i32 s40, s40, {14*1024}
        v_lshlrev_b32 v7, 4, v0
        v_add_u32 v7, s40, v7''')
    k('s_waitcnt lgkmcnt(0)')
    if qkv:
        k.srd(12, 4, 2048*896)
        k.srd(16, 6, 448*2688)
        k.srd(20, 8, 0x600000, QF)
    else:
        k.srd(12, 8, 128*14*1024, HF)
        k.srd(16, 6, 448*3584)
        k.srd(20, 8, 128*56*1024, GF)
        k.srd(24, 10, 1792*2)
        k(f'''s_lshl_b32 s41, s34, 7
        v_lshlrev_b32 v16, 5, v3
        v_add_u32 v16, s41, v16
        buffer_load_dwordx4 v[20:23], v16, s[24:27], 0 offen
        buffer_load_dwordx4 v[24:27], v16, s[24:27], 0 offen offset:16''')
    X = ACC
    for s in range(14):
        if qkv:
            k(f'buffer_load_dwordx4 v[{X+4*s}:{X+4*s+3}], v7, s[12:15], 0 offen offset:{64*s}')
        else:
            if s and s % 4 == 0: k('v_add_u32 v7, 4096, v7')
            k(f'buffer_load_dwordx4 v[{X+4*s}:{X+4*s+3}], v7, s[12:15], 0 offen offset:{1024*(s%4)}')
    def wrow(s):
        return (32*s if qkv else 64*(s >> 1) + 8*(s & 1))*RS
    def wload(s):
        o = [f's_mov_b32 s30, {wrow(s)}']
        b = RAW + (s % D)*16
        for e in range(8):
            o.append(f'buffer_load_dwordx2 v[{b+2*e}:{b+2*e+1}], v{VA+e}, s[16:19], s30 offen')
        return o
    nbias = 0 if qkv else 2
    npre = D if qkv else D - 1
    for s in range(npre):
        k('\n'.join(wload(s)))
    k(f'''v_mov_b32 v28, 0x3f803f80
    v_mov_b32 v30, 0
    v_mov_b32 v31, 0
    v_mov_b32 v32, 0
    v_mov_b32 v33, 0
    s_waitcnt vmcnt({8*npre})''')
    for i in range(56):
        k(f'v_dot2c_f32_bf16 v{30+(i&1)}, v{X+i}, v28')
        k(f'v_dot2c_f32_bf16 v{32+(i&1)}, v{X+i}, v{X+i}')
    if not qkv:
        k('\n'.join(wload(D-1)))
    k('s_nop 2\nv_add_f32 v30, v30, v31\nv_add_f32 v32, v32, v33\ns_nop 1')
    if qkv:
        for p in ('[1,0,3,2]', '[2,3,0,1]'):
            k(f'''v_add_f32_dpp v30, v30, v30 quad_perm:{p} row_mask:0xf bank_mask:0xf
            v_add_f32_dpp v32, v32, v32 quad_perm:{p} row_mask:0xf bank_mask:0xf
            s_nop 1''')
    else:
        for sw in ('v_permlane16_swap_b32', 'v_permlane32_swap_b32'):
            k(f'''v_mov_b32 v31, v30
            v_mov_b32 v33, v32
            s_nop 1
            {sw} v31, v30
            {sw} v33, v32
            s_nop 1
            v_add_f32 v30, v30, v31
            v_add_f32 v32, v32, v33''')
    k(f'''v_mul_f32 v30, {hex(f2u(1/448))}, v30
    v_mul_f32 v32, {hex(f2u(1/448))}, v32
    v_fma_f32 v32, -v30, v30, v32
    v_max_f32 v32, 0, v32
    v_add_f32 v32, {hex(f2u(1e-5))}, v32
    v_rsq_f32 v34, v32
    s_nop 0
    v_mul_f32 v36, v30, v34
    v_sub_f32 v36, 0, v36
    v_mov_b32 v35, v34
    v_mov_b32 v37, v36''')
    if qkv:
        k(f'''v_lshlrev_b32 v38, 1, v6
        v_xor_b32 v38, v38, v5
        v_lshlrev_b32 v38, 4, v38
        v_lshl_add_u32 v38, v6, 8, v38''')
    else:
        k('v_lshlrev_b32 v38, 4, v0')
    k(f'''s_mul_i32 s41, s33, 14336
    v_add_u32 v38, s41, v38''')
    for s in range(14):
        for j in range(4):
            r = X + 4*s + j; t = 40 + 2*(j & 1)
            k(f'''v_lshlrev_b32 v{t}, 16, v{r}
            v_and_b32 v{t+1}, 0xffff0000, v{r}
            v_pk_fma_f32 v[{t}:{t+1}], v[{t}:{t+1}], v[34:35], v[36:37]
            v_cvt_pk_bf16_f32 v{r}, v{t}, v{t+1}''')
        k(f'ds_write_b128 v38, v[{X+4*s}:{X+4*s+3}] offset:{1024*s}')
    if qkv:
        k(f'''v_lshlrev_b32 v39, 1, v3
        v_xor_b32 v39, v39, v2
        v_lshlrev_b32 v39, 4, v39
        v_lshl_add_u32 v39, v3, 8, v39''')
    else:
        k('v_lshlrev_b32 v39, 4, v0')
    k('s_waitcnt lgkmcnt(0)\ns_barrier')
    if qkv:
        k(f's_cmp_eq_u32 s33, 3\ns_cbranch_scc1 {name}_end')
    if qkv:
        for i in range(64): k(f'v_mov_b32 v{ACC+i}, 0')
    else:
        for j in range(8):
            r = j >> 1; f = 2*(j & 1)
            k(f'v_lshlrev_b32 v{ACC+f*4+r}, 16, v{20+j}\nv_and_b32 v{ACC+(f+1)*4+r}, 0xffff0000, v{20+j}')
        for tt in range(1, 4):
            for i in range(16): k(f'v_mov_b32 v{ACC+tt*16+i}, v{ACC+i}')
    def bread(s):
        return [f'ds_read_b128 a[{(s&1)*16+tt*4}:{(s&1)*16+tt*4+3}], v39 offset:{tt*14336+s*1024}' for tt in range(4)]
    def body(flip, tag):
        k('\n'.join(bread(0)))
        k(f's_waitcnt vmcnt({8*(D-1)})')
        k('\n'.join(perm_ops(RAW, AF, 28, 29)))
        k('\n'.join(wload(D)))
        for s in range(14):
            cur = s & 1
            last_issued = min(s + D, 13)
            if s < 13:
                k(f's_waitcnt vmcnt({8*(last_issued-(s+1))}) lgkmcnt(0)')
                k('\n'.join(bread(s+1)))
            else:
                k('s_waitcnt lgkmcnt(0)')
            m = []
            for tt in range(4):
                for f in range(4):
                    a = f'v[{AF+cur*16+4*f}:{AF+cur*16+4*f+3}]'; b = f'a[{cur*16+tt*4}:{cur*16+tt*4+3}]'
                    c = f'v[{ACC+(tt*4+f)*4}:{ACC+(tt*4+f)*4+3}]'
                    m.append(f'v_mfma_f32_16x16x32_bf16 {c}, {b}, {a}, {c}' if flip else f'v_mfma_f32_16x16x32_bf16 {c}, {a}, {b}, {c}')
            fill = perm_ops(RAW + ((s+1) % D)*16, AF + (1-cur)*16, 28, 29) if s < 13 else []
            k('\n'.join(interleave(m, fill)))
            if s + 1 + D <= 13: k('\n'.join(wload(s+1+D)))
        k('s_nop 7')
    A = lambda tt, f, r: ACC + (tt*4+f)*4 + r
    if qkv:
        k(f's_cmp_ge_u32 s34, 14\ns_cbranch_scc1 {name}_v')
        body(False, 'qk')
        k(f'''s_cmp_ge_u32 s34, 7
        s_cselect_b32 s42, 7, 0
        s_cselect_b32 s43, {hex(KF)}, 0
        s_sub_u32 s42, s34, s42
        s_lshl_b32 s42, s42, 4
        s_lshl_b32 s44, s31, 12
        s_add_u32 s43, s43, s44
        v_lshl_add_u32 v16, v3, 2, s42''')
        for r in range(4):
            k(f'''v_add_u32 v17, {r}, v16
            v_mul_u32_u24 v18, 147, v17
            v_lshrrev_b32 v18, 10, v18
            v_mul_u32_u24 v19, 7, v18
            v_sub_u32 v19, v17, v19
            v_lshlrev_b32 v{20+r}, 17, v18
            v_lshrrev_b32 v17, 2, v19
            v_lshl_add_u32 v{20+r}, v17, 10, v{20+r}
            v_bfe_u32 v17, v19, 1, 1
            v_lshl_add_u32 v{20+r}, v17, 9, v{20+r}
            v_and_b32 v17, 1, v19
            v_lshl_add_u32 v{20+r}, v17, 3, v{20+r}
            v_lshl_add_u32 v{20+r}, v2, 4, v{20+r}''')
        sc = f2u(math.log2(math.e)/math.sqrt(28))
        k(f's_mov_b32 s45, {hex(sc)}\ns_cmp_ge_u32 s34, 7\ns_cbranch_scc1 {name}_nosc')
        for i in range(64): k(f'v_mul_f32 v{ACC+i}, s45, v{ACC+i}')
        k.label(f'{name}_nosc')
        n = 0
        for tt in range(4):
            for r in range(4):
                t = 24 + 2*(n % 8); n += 1
                k(f'''v_cvt_pk_bf16_f32 v{t}, v{A(tt,0,r)}, v{A(tt,1,r)}
                v_cvt_pk_bf16_f32 v{t+1}, v{A(tt,2,r)}, v{A(tt,3,r)}
                buffer_store_dwordx2 v[{t}:{t+1}], v{20+r}, s[20:23], s43 offen offset:{(tt>>1)*2048+(tt&1)*256}''')
        k('s_endpgm')
        k.label(f'{name}_v')
        body(True, 'v')
        k(f'''s_sub_u32 s42, s34, 14
        s_lshl_b32 s42, s42, 4
        s_lshl_b32 s43, s31, 12
        s_add_u32 s43, s43, {hex(VF)}
        v_add_u32 v17, s42, v2
        v_mul_u32_u24 v18, 147, v17
        v_lshrrev_b32 v18, 10, v18
        v_mul_u32_u24 v19, 7, v18
        v_sub_u32 v19, v17, v19
        v_lshlrev_b32 v20, 17, v18
        v_lshl_add_u32 v20, v19, 6, v20
        v_and_b32 v17, 1, v3
        v_lshl_add_u32 v20, v17, 9, v20
        v_lshrrev_b32 v17, 1, v3
        v_lshl_add_u32 v20, v17, 3, v20''')
        n = 0
        for tt in range(4):
            for f in range(4):
                t = 24 + 2*(n % 8); n += 1
                k(f'''v_cvt_pk_bf16_f32 v{t}, v{A(tt,f,0)}, v{A(tt,f,1)}
                v_cvt_pk_bf16_f32 v{t+1}, v{A(tt,f,2)}, v{A(tt,f,3)}
                buffer_store_dwordx2 v[{t}:{t+1}], v{20}, s[20:23], s43 offen offset:{f*16+(tt>>1)*2048+(tt&1)*1024}''')
    else:
        body(False, 'g')
        c0 = -2*math.log2(math.e)*math.sqrt(2/math.pi); c1 = c0*0.044715
        k(f'''v_mov_b32 v16, {hex(f2u(c0))}
        v_mov_b32 v17, v16
        v_mov_b32 v18, {hex(f2u(c1))}
        v_mov_b32 v19, v18
        v_mov_b32 v4, 1.0
        v_mov_b32 v5, 1.0
        s_lshl_b32 s40, s31, 2
        s_mul_i32 s40, s40, {56*1024}
        s_lshl_b32 s41, s34, 11
        s_add_u32 s43, s40, s41
        v_lshlrev_b32 v20, 4, v0''')
        for tt in range(4):
            b = ACC + tt*16
            for h in range(2):
                prs = [b + 8*h + 2*i for i in range(4)]
                T = [24 + 2*i for i in range(4)]
                for p, t in zip(prs, T): k(f'v_pk_mul_f32 v[{t}:{t+1}], v[{p}:{p+1}], v[{p}:{p+1}]')
                for p, t in zip(prs, T): k(f'v_pk_fma_f32 v[{t}:{t+1}], v[{t}:{t+1}], v[18:19], v[16:17]')
                for p, t in zip(prs, T): k(f'v_pk_mul_f32 v[{t}:{t+1}], v[{t}:{t+1}], v[{p}:{p+1}]')
                for t in range(24, 32): k(f'v_exp_f32 v{t}, v{t}')
                for p, t in zip(prs, T): k(f'v_pk_add_f32 v[{t}:{t+1}], v[{t}:{t+1}], v[4:5]')
                for t in range(24, 32): k(f'v_rcp_f32 v{t}, v{t}')
                for p, t in zip(prs, T): k(f'v_pk_mul_f32 v[{p}:{p+1}], v[{p}:{p+1}], v[{t}:{t+1}]')
            for sp in range(2):
                t = 32 + 8*(tt & 1) + 4*sp
                for j in range(4):
                    r = 2*sp + (j >> 1); f = 2*(j & 1)
                    k(f'v_cvt_pk_bf16_f32 v{t+j}, v{A(tt,f,r)}, v{A(tt,f+1,r)}')
                k(f'buffer_store_dwordx4 v[{t}:{t+3}], v20, s[20:23], s43 offen offset:{sp*1024}')
            if tt < 3: k(f's_add_u32 s43, s43, {56*1024}')
    k.label(f'{name}_end')
    k('s_endpgm')
    return name, header(name) + '\n' + k.text(), desc(name, 256, 32), (224, 256, 57344)
```

```python
from common import *

def sk_gemm(mode):
    wo = mode == 'wo'
    name = 'k3_wo_kernel' if wo else 'k5_ffn2_kernel'
    k = K(name)
    D = 4 if wo else 5
    ACC, RAW, AF, VA = 64, 128, 208, 8
    RS = 896
    k(f'''s_cmp_ge_u32 s2, 224
    s_cbranch_scc1 {name}_end
    s_load_dwordx2 s[4:5], s[0:1], {ARG['x'] if wo else ARG['b2']}
    s_load_dwordx2 s[6:7], s[0:1], {ARG['wo'] if wo else ARG['w2']}
    s_load_dwordx2 s[8:9], s[0:1], {ARG['ws']}
    s_load_dwordx2 s[10:11], s[0:1], {ARG['out']}
    v_lshrrev_b32 v1, 6, v0
    v_and_b32 v0, 63, v0
    s_and_b32 s35, s2, 7
    s_lshr_b32 s36, s2, 3
    v_readfirstlane_b32 s33, v1
    s_mul_i32 s37, s36, 37
    s_lshr_b32 s37, s37, 8
    s_mul_i32 s38, s37, 7
    s_sub_u32 s32, s36, s38
    s_lshl_b32 s31, s35, 2
    s_add_u32 s31, s31, s37
    s_mov_b32 s28, {hex(PERM_LO)}
    s_mov_b32 s29, {hex(PERM_HI)}
    v_and_b32 v2, 15, v0
    v_lshrrev_b32 v3, 4, v0
    s_lshl_b32 s39, s32, 7
    v_mul_u32_u24 v4, {RS*(8 if wo else 16)}, v3
    v_lshl_add_u32 v4, v2, 3, v4
    v_add_u32 v{VA}, s39, v4''')
    for e in range(1, 8):
        k(f'v_add_u32 v{VA+e}, {RS*e}, v{VA}')
    NS = 14 if wo else 56
    if wo:
        k('''s_lshl_b32 s40, s33, 2
        s_cmp_eq_u32 s33, 3
        s_cselect_b32 s41, 1, 0
        s_sub_u32 s40, s40, s41''')
    else:
        k('s_mul_i32 s40, s33, 14')
    k(f'''s_lshl_b32 s41, s31, 2
    s_mul_i32 s41, s41, {NS*1024}
    s_lshl_b32 s42, s40, 10
    s_add_u32 s41, s41, s42
    v_lshlrev_b32 v22, 4, v0''')
    for tt in range(4):
        k(f'''s_add_u32 s42, s33, {tt}
        s_and_b32 s42, s42, 3
        s_lshl_b32 s{52+tt}, s42, 14
        s_mul_i32 s42, s42, {NS*1024}
        s_add_u32 s42, s42, s41
        v_add_u32 v{16+tt}, s42, v22''')
    k(f's_mul_i32 s44, s40, {32*RS}')
    k('s_waitcnt lgkmcnt(0)')
    k.srd(16, 6, (448 if wo else 1792)*RS)
    k.srd(12, 8, 128*NS*1024, OF if wo else GF)
    k.srd(20, 8, 128*14*1024, HF)
    k(f'''s_lshl_b32 s45, s31, 2
    s_add_u32 s45, s45, s33
    s_mul_i32 s46, s45, {14*1024}
    s_lshl_b32 s47, s32, 11
    s_add_u32 s46, s46, s47
    v_lshlrev_b32 v20, 4, v0
    s_lshl_b32 s48, s45, 4
    v_add_u32 v21, s48, v2
    v_mul_u32_u24 v21, 896, v21
    v_lshl_add_u32 v21, v3, 5, v21
    v_add_u32 v21, s39, v21''')
    if wo:
        k.srd(24, 4, 2048*896)
        epi = ['buffer_load_dwordx4 v[24:27], v21, s[24:27], 0 offen',
               'buffer_load_dwordx4 v[28:31], v21, s[24:27], 0 offen offset:16']
    else:
        k.srd(24, 4, 896)
        k.srd(48, 10, 2048*896)
        k('v_lshlrev_b32 v23, 5, v3\nv_add_u32 v23, s39, v23')
        epi = ['buffer_load_dwordx4 v[24:27], v20, s[20:23], s46 offen',
               'buffer_load_dwordx4 v[28:31], v20, s[20:23], s46 offen offset:1024',
               'buffer_load_dwordx4 v[32:35], v23, s[24:27], 0 offen',
               'buffer_load_dwordx4 v[36:39], v23, s[24:27], 0 offen offset:16']
    def loads(j):
        if wo: wro, ao = 32*j*RS, j*1024
        else:  wro, ao = (64*(j >> 1) + 8*(j & 1))*RS, j*1024
        o = [f's_add_u32 s30, s44, {wro}', f's_mov_b32 s43, {ao}']
        b = RAW + (j % D)*16
        for e in range(8):
            o.append(f'buffer_load_dwordx2 v[{b+2*e}:{b+2*e+1}], v{VA+e}, s[16:19], s30 offen')
        for tt in range(4):
            a = (j % (D+1))*16 + tt*4
            o.append(f'buffer_load_dwordx4 a[{a}:{a+3}], v{16+tt}, s[12:15], s43 offen')
        return o
    def body(n):
        q = []
        def issue(tag, ins):
            k('\n'.join(ins)); q.extend([tag]*sum(i.startswith('buffer_') for i in ins))
            assert len(q) <= 63
        def wait(tag):
            last = max(i for i, t in enumerate(q) if t == tag)
            k(f's_waitcnt vmcnt({len(q)-1-last})'); del q[:last+1]
        d = min(D, n)
        for j in range(d): issue(j, loads(j))
        epi_done = False
        if n <= D: issue('e', epi); epi_done = True
        for i in range(64): k(f'v_mov_b32 v{ACC+i}, 0')
        wait(0)
        k('\n'.join(perm_ops(RAW, AF, 28, 29)))
        if D < n: issue(D, loads(D))
        for s in range(n):
            cur = s & 1
            if s < n-1: wait(s+1)
            m = []
            for tt in range(4):
                for f in range(4):
                    a = f'v[{AF+cur*16+4*f}:{AF+cur*16+4*f+3}]'
                    ab = (s % (D+1))*16 + tt*4
                    c = f'v[{ACC+(tt*4+f)*4}:{ACC+(tt*4+f)*4+3}]'
                    m.append(f'v_mfma_f32_16x16x32_bf16 {c}, {a}, a[{ab}:{ab+3}], {c}')
            fill = perm_ops(RAW + ((s+1) % D)*16, AF + (1-cur)*16, 28, 29) if s < n-1 else []
            k('\n'.join(interleave(m, fill)))
            if s + 1 + D <= n-1: issue(s+1+D, loads(s+1+D))
            elif not epi_done: issue('e', epi); epi_done = True
    if wo:
        k(f's_cmp_ge_u32 s33, 2\ns_cbranch_scc1 {name}_b3')
        body(4)
        k(f's_branch {name}_red')
        k.label(f'{name}_b3')
        body(3)
        k.label(f'{name}_red')
    else:
        body(14)
    k('s_nop 7')
    for i in range(1, 4):
        k(f'v_add_u32 v{4+i}, s{52+i}, v22')
        for f in range(4):
            k(f'ds_write_b128 v{4+i}, v[{ACC+(i*4+f)*4}:{ACC+(i*4+f)*4+3}] offset:{i*4096+f*1024}')
    k('v_add_u32 v22, s52, v22\ns_waitcnt lgkmcnt(0)\ns_barrier')
    for i in range(1, 4):
        for f in range(4):
            k(f'ds_read_b128 v[{ACC+i*16+f*4}:{ACC+i*16+f*4+3}], v22 offset:{i*4096+f*1024}')
    for i in range(1, 4):
        k(f's_waitcnt lgkmcnt({12-4*i})')
        for j in range(0, 16, 2):
            k(f'v_pk_add_f32 v[{ACC+j}:{ACC+j+1}], v[{ACC+j}:{ACC+j+1}], v[{ACC+i*16+j}:{ACC+i*16+j+1}]')
    A = lambda f, r: ACC + f*4 + r
    k('s_waitcnt vmcnt(0)')
    for j in range(8):
        r = j >> 1; f = 2*(j & 1)
        k(f'''v_lshlrev_b32 v56, 16, v{24+j}
        v_and_b32 v57, 0xffff0000, v{24+j}
        v_add_f32 v{A(f,r)}, v{A(f,r)}, v56
        v_add_f32 v{A(f+1,r)}, v{A(f+1,r)}, v57''')
        if not wo:
            k(f'''v_lshlrev_b32 v56, 16, v{32+j}
            v_and_b32 v57, 0xffff0000, v{32+j}
            v_add_f32 v{A(f,r)}, v{A(f,r)}, v56
            v_add_f32 v{A(f+1,r)}, v{A(f+1,r)}, v57''')
    for j in range(8):
        r = j >> 1; f = 2*(j & 1)
        k(f'v_cvt_pk_bf16_f32 v{40+j}, v{A(f,r)}, v{A(f+1,r)}')
    if wo:
        k('''buffer_store_dwordx4 v[40:43], v20, s[20:23], s46 offen
        buffer_store_dwordx4 v[44:47], v20, s[20:23], s46 offen offset:1024''')
    else:
        k('''buffer_store_dwordx4 v[40:43], v21, s[48:51], 0 offen
        buffer_store_dwordx4 v[44:47], v21, s[48:51], 0 offen offset:16''')
    k.label(f'{name}_end')
    k('s_endpgm')
    return name, header(name) + '\n' + k.text(), desc(name, 240, 16*(D+1)), (224, 256, 65536)
```

```python
import sys
from common import *
from lngemm import ln_gemm
from attn import attn_full
ks = [ln_gemm('qkv'), attn_full()]
ref = open('sequential_preLN__mha_block__dense_activation_gelu__prompt.s.ref').read().split('\n')
head = [l for l in ref if l.startswith(';') and '@launch' not in l and 'Override' not in l and 'grid=ceil' not in l]
out = head[:]
for n, _, _, (g, b, l) in ks:
    out.append(f'; @launch kernel={n} grid=({g},1,1) block=({b},1,1) lds={l}')
out += ['.amdgcn_target "amdgcn-amd-amdhsa--gfx950"', '.text']
for n, t, _, _ in ks: out.append(t)
out.append('.section .rodata,"a"')
for n, _, d, _ in ks: out.append(d)
path = sys.argv[1] if len(sys.argv) > 1 else 'sequential_preLN__mha_block__dense_activation_gelu__prompt.s'
open(path, 'w').write('\n'.join(out) + '\n')
```

```python
from common import *

def attn():
    name = 'k2_attn_kernel'
    k = K(name)
    Q, O, S, P, KB, VB, M = 16, 48, 112, 144, 160, 192, 224
    k(f'''s_cmp_ge_u32 s2, 256
    s_cbranch_scc1 {name}_end
    s_load_dwordx2 s[8:9], s[0:1], {ARG['ws']}
    v_lshrrev_b32 v1, 6, v0
    v_mov_b32 v15, v0
    v_and_b32 v0, 63, v0
    s_and_b32 s35, s2, 7
    s_lshr_b32 s36, s2, 3
    v_readfirstlane_b32 s33, v1
    s_lshr_b32 s37, s36, 4
    s_lshl_b32 s31, s35, 1
    s_add_u32 s31, s31, s37
    s_and_b32 s32, s36, 15
    v_lshlrev_b32 v2, 4, v0
    s_lshl_b32 s38, s31, 17
    s_lshl_b32 s39, s32, 13
    s_add_u32 s39, s39, s38
    s_lshl_b32 s40, s33, 15
    s_add_u32 s40, s40, s38
    s_mov_b32 s42, 0x0fffffff
    s_mov_b32 s43, 0x0fffffff
    v_cmp_gt_u32 vcc, 32, v0
    v_cndmask_b32 v3, 0, -1, vcc
    s_mov_b32 s47, 0
    s_waitcnt lgkmcnt(0)''')
    k.stamp(14)
    k.srd(12, 8, 0x200000, QF)
    k.srd(16, 8, 0x200000, KF)
    k.srd(20, 8, 0x200000, VF)
    k.srd(24, 8, 128*14336, OF)
    for c in range(4):
        for m in range(2):
            if c == 2 and m == 0: k('s_add_u32 s39, s39, 4096')
            k(f'buffer_load_dwordx4 v[{Q+(c*2+m)*4}:{Q+(c*2+m)*4+3}], v2, s[12:15], s39 offen offset:{(c&1)*2048+m*1024}')
    for i in range(32): k(f'v_mov_b32 v{VB+i}, 0x3f803f80')
    def kv(buf, sreg):
        return [f'buffer_load_dwordx4 v[{KB+buf*8}:{KB+buf*8+3}], v2, s[16:19], {sreg} offen',
                f'buffer_load_dwordx4 v[{KB+buf*8+4}:{KB+buf*8+7}], v2, s[16:19], {sreg} offen offset:1024',
                's_mov_b64 exec, s[42:43]',
                f'buffer_load_dwordx4 v[{VB+buf*8}:{VB+buf*8+3}], v2, s[20:23], {sreg} offen',
                f'buffer_load_dwordx4 v[{VB+buf*8+4}:{VB+buf*8+7}], v2, s[20:23], {sreg} offen offset:1024',
                's_mov_b64 exec, -1']
    k('s_mov_b32 s41, s40')
    for j in range(3):
        k('\n'.join(kv(j, 's41')))
        k('s_add_u32 s41, s41, 2048')
    for i in range(64): k(f'v_mov_b32 v{O+i}, 0')
    for i in range(16): k(f'v_mov_b32 v{P+i}, 0')
    def kmask(buf): return [f'v_and_b32 v{KB+buf*8+6}, v3, v{KB+buf*8+6}', f'v_and_b32 v{KB+buf*8+7}, v3, v{KB+buf*8+7}']
    def qk(buf, c, sb):
        d = f'v[{S+sb*16}:{S+sb*16+15}]'
        return [f'v_mfma_f32_32x32x16_bf16 {d}, v[{KB+buf*8}:{KB+buf*8+3}], v[{Q+c*8}:{Q+c*8+3}], 0',
                f'v_mfma_f32_32x32x16_bf16 {d}, v[{KB+buf*8+4}:{KB+buf*8+7}], v[{Q+c*8+4}:{Q+c*8+7}], {d}']
    def pv(buf, c, pb):
        d = f'v[{O+c*16}:{O+c*16+15}]'
        return [f'v_mfma_f32_32x32x16_bf16 {d}, v[{VB+buf*8}:{VB+buf*8+3}], v[{P+pb*8}:{P+pb*8+3}], {d}',
                f'v_mfma_f32_32x32x16_bf16 {d}, v[{VB+buf*8+4}:{VB+buf*8+7}], v[{P+pb*8+4}:{P+pb*8+7}], {d}']
    k.stamp(14)
    k('s_waitcnt vmcnt(8)')
    k.stamp(14)
    for c in range(4):
        k(f'v_and_b32 v{Q+c*8+6}, v3, v{Q+c*8+6}\nv_and_b32 v{Q+c*8+7}, v3, v{Q+c*8+7}')
    k('\n'.join(kmask(0)))
    k('s_nop 1')
    k('\n'.join(qk(0, 0, 0)))
    k('s_mov_b32 s44, 0\ns_nop 7\ns_nop 3')
    k.label(f'{name}_loop')
    for jj in range(4):
        for c in range(4):
            sb = c & 1
            nb = (jj + (c == 3)) % 4
            pre = []
            if c == 3: pre = ['s_waitcnt vmcnt(8)'] + kmask(nb)
            a = qk(nb, (c+1) & 3, 1-sb)
            b = pv((jj - (c == 0)) % 4, (c-1) & 3, 1-sb)
            ex = [f'v_exp_f32 v{S+sb*16+i}, v{S+sb*16+i}' for i in range(16)]
            cv = [f'v_cvt_pk_bf16_f32 v{P+sb*8+i}, v{S+sb*16+2*i}, v{S+sb*16+2*i+1}' for i in range(8)]
            seq = pre + ex[0:2] + [a[0]] + ex[2:7] + [cv[0], cv[1], a[1]] + ex[7:11] + [cv[2], cv[3], cv[4], b[0]] + ex[11:16] + [cv[5], cv[6], b[1], cv[7]]
            if c == 1:
                seq = seq[:3] + kv((jj+3) % 4, 's41') + ['s_add_u32 s41, s41, 2048'] + seq[3:]
            k('\n'.join(seq))
    k(f'''s_add_u32 s44, s44, 1
    s_cmp_lt_u32 s44, 4
    s_cbranch_scc1 {name}_loop
    s_nop 1''')
    k('\n'.join(pv(3, 3, 1)))
    k.stamp(14)
    k.label(f'{name}_comb')
    k(f'''v_lshrrev_b32 v4, 5, v0
    v_and_b32 v5, 31, v0
    v_lshlrev_b32 v4, 11, v4
    v_lshl_add_u32 v4, v5, 4, v4
    s_lshl_b32 s45, s33, 14
    v_add_u32 v4, s45, v4
    s_nop 7
    s_nop 7''')
    for c in range(4):
        for j in range(4):
            k(f'ds_write_b128 v4, v[{O+c*16+4*j}:{O+c*16+4*j+3}] offset:{j*4096+c*512}')
    k(f'''v_and_b32 v5, 127, v15
    v_lshlrev_b32 v6, 4, v5
    v_xor_b32 v7, 1024, v6
    s_waitcnt lgkmcnt(0)
    s_barrier''')
    k.stamp(14)
    for w in range(4):
        k(f'ds_read_b32 v{8+w}, v6 offset:{w*16384+7*2048}')
    for w in range(4):
        k(f'ds_read_b32 v{S+w}, v7 offset:{w*16384+7*2048}')
    k(f'''s_lshr_b32 s46, s33, 1
    s_lshl_b32 s45, s46, 11
    v_add_u32 v6, s45, v6''')
    for i in range(4):
        for w in range(4):
            r = KB + (i*4+w)*4
            k(f'ds_read_b128 v[{r}:{r+3}], v6 offset:{w*16384+i*4096}')
        if i == 0: k('s_waitcnt lgkmcnt(4)')
        if i == 2: k('s_waitcnt lgkmcnt(8)')
    k(f'''v_add_f32 v8, v8, v9
    v_add_f32 v10, v10, v11
    v_add_f32 v{S}, v{S}, v{S+1}
    v_add_f32 v{S+2}, v{S+2}, v{S+3}
    v_add_f32 v8, v8, v10
    v_add_f32 v{S}, v{S}, v{S+2}
    s_cmp_lg_u32 s47, 0
    s_cbranch_scc1 {name}_ok
    v_mov_b32 v9, {hex(f2u(2.0**-60))}
    v_mov_b32 v10, {hex(f2u(2.0**60))}
    v_cmp_ge_f32 s[48:49], v8, v9
    v_cmp_le_f32 s[50:51], v8, v10
    v_cmp_ge_f32 s[52:53], v{S}, v9
    v_cmp_le_f32 s[54:55], v{S}, v10
    s_and_b64 s[48:49], s[48:49], s[50:51]
    s_and_b64 s[52:53], s[52:53], s[54:55]
    s_and_b64 s[48:49], s[48:49], s[52:53]
    s_cmp_eq_u64 s[48:49], -1
    s_cbranch_scc0 {name}_slow''')
    k.label(f'{name}_ok')
    k(f'''v_rcp_f32 v8, v8
    v_lshrrev_b32 v9, 4, v5
    v_mul_u32_u24 v9, 14336, v9
    v_and_b32 v10, 15, v5
    v_lshl_add_u32 v9, v10, 4, v9
    s_mul_i32 s48, s32, {8*14336}
    s_mul_i32 s49, s31, 7
    s_add_u32 s49, s49, s46
    s_waitcnt lgkmcnt(0)''')
    for i in range(4):
        if i == 3: k.stamp(14, True)
        if i == 3: k(f's_cmp_eq_u32 s46, 1\ns_cbranch_scc1 {name}_end')
        r = KB + i*16
        k(f'''v_pk_add_f32 v[{r}:{r+1}], v[{r}:{r+1}], v[{r+4}:{r+5}]
        v_pk_add_f32 v[{r+2}:{r+3}], v[{r+2}:{r+3}], v[{r+6}:{r+7}]
        v_pk_add_f32 v[{r+8}:{r+9}], v[{r+8}:{r+9}], v[{r+12}:{r+13}]
        v_pk_add_f32 v[{r+10}:{r+11}], v[{r+10}:{r+11}], v[{r+14}:{r+15}]
        v_pk_add_f32 v[{r}:{r+1}], v[{r}:{r+1}], v[{r+8}:{r+9}]
        v_pk_add_f32 v[{r+2}:{r+3}], v[{r+2}:{r+3}], v[{r+10}:{r+11}]
        v_mul_f32 v{r}, v8, v{r}
        v_mul_f32 v{r+1}, v8, v{r+1}
        v_mul_f32 v{r+2}, v8, v{r+2}
        v_mul_f32 v{r+3}, v8, v{r+3}
        v_cvt_pk_bf16_f32 v{r+4}, v{r}, v{r+1}
        v_cvt_pk_bf16_f32 v{r+5}, v{r+2}, v{r+3}
        s_lshr_b32 s50, s49, 3
        s_lshl_b32 s50, s50, 10
        s_bfe_u32 s51, s49, 0x20001
        s_lshl_b32 s51, s51, 8
        s_and_b32 s52, s49, 1
        s_lshl_b32 s52, s52, 3
        s_add_u32 s50, s50, s51
        s_add_u32 s50, s50, s52
        s_add_u32 s50, s50, s48
        buffer_store_dwordx2 v[{r+4}:{r+5}], v9, s[24:27], s50 offen
        s_add_u32 s49, s49, 2''')
    k('s_endpgm')
    k.label(f'{name}_slow')
    k('s_waitcnt lgkmcnt(0) vmcnt(0)\ns_barrier\ns_mov_b32 s47, 1\ns_mov_b32 s41, s40\ns_mov_b32 s44, 0')
    for i in range(64): k(f'v_mov_b32 v{O+i}, 0')
    for i in range(32): k(f'v_mov_b32 v{VB+i}, 0x3f803f80')
    for c in range(4): k(f'v_mov_b32 v{M+c}, {hex(f2u(-3.0e38))}')
    k.label(f'{name}_sloop')
    k('\n'.join(kv(0, 's41')))
    k('s_add_u32 s41, s41, 2048\ns_waitcnt vmcnt(0)')
    k('\n'.join(kmask(0)))
    for c in range(4):
        k('s_nop 1')
        k('\n'.join(qk(0, c, 0)))
        k('s_nop 7\ns_nop 7')
        k(f'v_max_f32 v4, v{S}, v{S+1}')
        for i in range(2, 16, 2): k(f'v_max3_f32 v4, v4, v{S+i}, v{S+i+1}')
        k(f'''v_mov_b32 v5, v4
        s_nop 1
        v_permlane32_swap_b32 v5, v4
        s_nop 1
        v_max3_f32 v4, v4, v5, v{M+c}
        v_sub_f32 v5, v{M+c}, v4
        v_exp_f32 v5, v5
        v_mov_b32 v{M+c}, v4''')
        for i in range(16): k(f'v_mul_f32 v{O+c*16+i}, v5, v{O+c*16+i}')
        for i in range(16): k(f'v_sub_f32 v{S+i}, v{S+i}, v4')
        for i in range(16): k(f'v_exp_f32 v{S+i}, v{S+i}')
        k('s_nop 0')
        for i in range(8): k(f'v_cvt_pk_bf16_f32 v{P+i}, v{S+2*i}, v{S+2*i+1}')
        k('s_nop 1')
        k('\n'.join(pv(0, c, 0)))
        k('s_nop 7\ns_nop 7')
    k(f'''s_add_u32 s44, s44, 1
    s_cmp_lt_u32 s44, 16
    s_cbranch_scc1 {name}_sloop
    v_and_b32 v5, 31, v0
    v_lshlrev_b32 v5, 2, v5
    s_lshl_b32 s45, s33, 9
    v_add_u32 v4, s45, v5''')
    for c in range(4): k(f'ds_write_b32 v4, v{M+c} offset:{63488+c*128}')
    return k, name, (Q, O, S, P, KB, VB, M)

def attn_full():
    k, name, (Q, O, S, P, KB, VB, M) = attn()
    k('s_waitcnt lgkmcnt(0)\ns_barrier')
    for c in range(4):
        for w in range(4):
            k(f'ds_read_b32 v{S+c*4+w}, v5 offset:{63488+w*512+c*128}')
    k('s_waitcnt lgkmcnt(0)\ns_barrier')
    for c in range(4):
        k(f'''v_max_f32 v4, v{S+c*4}, v{S+c*4+1}
        v_max3_f32 v4, v4, v{S+c*4+2}, v{S+c*4+3}
        v_sub_f32 v4, v{M+c}, v4
        v_exp_f32 v4, v4
        s_nop 0''')
        for i in range(16): k(f'v_mul_f32 v{O+c*16+i}, v4, v{O+c*16+i}')
    k(f's_branch {name}_comb')
    k.label(f'{name}_end')
    k('s_endpgm')
    return name, header(name) + '\n' + k.text(), desc(name, 232, 0), (256, 256, 65536)
```

```python
import math
QF, KF, VF, OF, HF, GF = 0x0, 0x200000, 0x400000, 0x600000, 0x800000, 0xA00000
PWO, PW1, PW2 = 0x1200000, 0x1280000, 0x1500000
ARG = dict(x=0, wqkv=8, wo=16, w1=32, b1=40, w2=48, b2=56, out=64, dbg=72, ws=80)

def f2u(x):
    import struct
    return struct.unpack('<I', struct.pack('<f', x))[0]

class K:
    def __init__(s, name):
        s.name = name; s.L = []; s.nl = 0
    def __call__(s, t):
        for ln in t.split('\n'):
            ln = ln.strip()
            if ln: s.L.append('    ' + ln)
    def label(s, n): s.L.append(n + ':')
    def mark(s): return len(s.L)
    def host(s, start, groups, end=None):
        end = len(s.L) if end is None else end
        body = s.L[start:end]; ins = []
        for g in groups:
            pend = []
            for i in g:
                pend.append('    ' + i)
                if i.startswith('buffer_'): ins.append(pend); pend = []
        out = []; n = len(body); m = len(ins); j = 0
        for i, ln in enumerate(body):
            while j < m and j*n <= i*m:
                out += ins[j]; j += 1
            out.append(ln)
        for g in ins[j:]: out += g
        s.L[start:end] = out
    def stamp(s, vreg, final=False):
        import os
        if not os.environ.get('STAMP'): return
        i = s.nl; s.nl += 1
        s(f'{os.environ.get("STAMPI", "s_memtime")} s[90:91]\ns_waitcnt lgkmcnt(0)\nv_writelane_b32 v{vreg}, s90, {i}')
        if final:
            wg = os.environ.get('STAMP')
            s(f'''s_cmp_lg_u32 s2, {wg}
            s_cbranch_scc1 {s.name}_ns{i}
            s_cmp_lg_u32 s33, {os.environ.get('STAMPW', 0)}
            s_cbranch_scc1 {s.name}_ns{i}
            s_load_dwordx2 s[88:89], s[0:1], 72
            v_mbcnt_lo_u32_b32 v0, -1, 0
            v_mbcnt_hi_u32_b32 v0, -1, v0
            v_lshlrev_b32 v0, 2, v0
            s_waitcnt lgkmcnt(0)
            global_store_dword v0, v{vreg}, s[88:89]''')
            s.label(f'{s.name}_ns{i}')
    def text(s): return '\n'.join(s.L)
    def srd(s, r, arg_s, nbytes, off=0):
        if off:
            s(f's_add_u32 s{r}, s{arg_s}, {hex(off)}')
            s(f's_addc_u32 s{r+1}, s{arg_s+1}, 0')
        else:
            s(f's_mov_b32 s{r}, s{arg_s}')
            s(f's_mov_b32 s{r+1}, s{arg_s+1}')
        s(f's_mov_b32 s{r+2}, {hex(nbytes)}')
        s(f's_mov_b32 s{r+3}, 0x00020000')

def vr(b, n=1, p='v'):
    return f'{p}{b}' if n == 1 else f'{p}[{b}:{b+n-1}]'

def header(name):
    return f'.globl {name}\n.p2align 8\n.type {name},@function\n{name}:'

def desc(name, vgpr, agpr, sgpr=96):
    acc = (vgpr + 3)//4*4
    nfv = acc + agpr if agpr else vgpr
    return f'''.p2align 6
.amdhsa_kernel {name}
  .amdhsa_next_free_vgpr {nfv}
  .amdhsa_next_free_sgpr {sgpr}
  .amdhsa_accum_offset {acc}
  .amdhsa_group_segment_fixed_size 0
  .amdhsa_kernarg_size 88
  .amdhsa_user_sgpr_count 2
  .amdhsa_user_sgpr_kernarg_segment_ptr 1
  .amdhsa_system_sgpr_workgroup_id_x 1
.end_amdhsa_kernel'''

PERM_LO, PERM_HI = 0x05040100, 0x07060302

def interleave(main, fill, per=None):
    out = []; n = len(main); m = len(fill); j = 0
    for i, a in enumerate(main):
        out.append(a)
        tgt = (i+1)*m//n if per is None else min(m, (i+1)*per)
        while j < tgt:
            out.append(fill[j]); j += 1
    out += fill[j:]
    return out

def perm_ops(raw, af, slo, shi):
    o = []
    for f in range(4):
        for j in range(4):
            a = raw + (2*j)*2 + (f >> 1); b = raw + (2*j+1)*2 + (f >> 1)
            o.append(f'v_perm_b32 v{af+4*f+j}, v{b}, v{a}, s{shi if f & 1 else slo}')
    return o
```

```python
from common import *
CNT = 0x1700000

def fused():
    name = 'k3_mlp_kernel'
    k = K(name); SV = 15
    ACC = 64
    q = []
    def issue(tag, ins):
        k('\n'.join(ins)); q.extend([tag]*sum(i.startswith('buffer_') for i in ins))
        assert len(q) <= 63, len(q)
    def wait(tag, extra=''):
        idx = [i for i, t in enumerate(q) if t == tag]
        if not idx:
            if extra: k('s_waitcnt' + extra)
            return
        k(f's_waitcnt vmcnt({len(q)-1-idx[-1]}){extra}'); del q[:idx[-1]+1]
    def drain(): k('s_waitcnt vmcnt(0)'); q.clear()
    k(f'''s_cmp_ge_u32 s2, 224
    s_cbranch_scc1 {name}_end
    s_load_dwordx2 s[4:5], s[0:1], {ARG['x']}
    s_load_dwordx2 s[6:7], s[0:1], {ARG['b1']}
    s_load_dwordx2 s[8:9], s[0:1], {ARG['ws']}
    s_load_dwordx2 s[60:61], s[0:1], {ARG['b2']}
    s_load_dwordx2 s[62:63], s[0:1], {ARG['out']}
    v_lshrrev_b32 v1, 6, v0
    v_and_b32 v0, 63, v0
    s_and_b32 s35, s2, 7
    s_lshr_b32 s36, s2, 3
    v_readfirstlane_b32 s33, v1
    s_mul_i32 s37, s36, 37
    s_lshr_b32 s37, s37, 8
    s_mul_i32 s38, s37, 7
    s_sub_u32 s32, s36, s38
    s_lshl_b32 s31, s35, 2
    s_add_u32 s31, s31, s37
    v_and_b32 v2, 15, v0
    v_lshrrev_b32 v3, 4, v0
    v_lshlrev_b32 v22, 4, v0
    s_lshl_b32 s39, s32, 7''')
    k.stamp(SV)
    k(f'''s_lshl_b32 s40, s33, 2
    s_cmp_eq_u32 s33, 3
    s_cselect_b32 s41, 1, 0
    s_sub_u32 s40, s40, s41
    s_lshl_b32 s45, s31, 2''')
    for tt in range(4):
        k(f'''s_add_u32 s42, s33, {tt}
        s_and_b32 s42, s42, 3
        s_lshl_b32 s{52+tt}, s42, 14
        s_add_u32 s42, s42, s45
        s_mul_i32 s43, s42, 14
        s_add_u32 s43, s43, s40
        s_lshl_b32 s43, s43, 10
        v_add_u32 v{16+tt}, s43, v22
        s_mul_i32 s43, s42, 56
        s_mul_i32 s44, s33, 14
        s_add_u32 s43, s43, s44
        s_lshl_b32 s43, s43, 10
        v_add_u32 v{8+tt}, s43, v22''')
    k(f'''s_mul_i32 s44, s32, 14
    s_add_u32 s44, s44, s40
    s_lshl_b32 s44, s44, 12
    s_add_u32 s45, s45, s33
    s_mul_i32 s46, s45, {14*1024}
    s_lshl_b32 s47, s32, 11
    s_add_u32 s56, s46, s47
    s_lshl_b32 s48, s45, 4
    v_add_u32 v21, s48, v2
    v_mul_u32_u24 v21, 896, v21
    v_lshl_add_u32 v21, v3, 5, v21
    v_add_u32 v21, s39, v21
    s_lshl_b32 s34, s32, 2
    s_add_u32 s34, s34, s33
    s_mul_i32 s57, s34, {14*4096}
    s_mul_i32 s58, s32, 56
    s_mul_i32 s59, s33, 14
    s_add_u32 s58, s58, s59
    s_lshl_b32 s58, s58, 12
    s_waitcnt lgkmcnt(0)''')
    k.srd(12, 8, 128*14*1024, OF); k.srd(16, 8, 98*4096, PWO); k.srd(20, 8, 128*14*1024, HF)
    k.srd(24, 4, 2048*896); k.srd(64, 8, 392*4096, PW1); k.srd(68, 8, 392*4096, PW2)
    k.srd(72, 8, 128*56*1024, GF); k.srd(76, 6, 1792*2); k.srd(80, 60, 896); k.srd(84, 62, 2048*896)
    k.srd(4, 8, 64*128, CNT)
    def w1load(s): return [f's_add_u32 s30, s57, {s*4096}'] + [f'buffer_load_dwordx4 a[{s*16+4*f}:{s*16+4*f+3}], v22, s[64:67], s30 offen offset:{f*1024}' for f in range(4)]
    def w2load(s): return [f's_add_u32 s30, s58, {s*4096}'] + [f'buffer_load_dwordx4 a[{s*16+4*f}:{s*16+4*f+3}], v22, s[68:71], s30 offen offset:{f*1024}' for f in range(4)]
    def publish(cnt_off):
        drain()
        k(f'''s_barrier
        s_cmp_lg_u32 s33, 0
        s_cbranch_scc1 {name}_p{cnt_off}
        s_lshl_b32 s42, s31, 7
        s_add_u32 s42, s42, {cnt_off}
        v_mov_b32 v4, 1
        v_mov_b32 v5, 0
        s_mov_b64 exec, 1
        buffer_atomic_add v4, v5, s[4:7], s42 offen sc1
        s_mov_b32 s43, 0''')
        k.label(f'{name}_l{cnt_off}')
        k(f'''buffer_load_dword v4, v5, s[4:7], s42 offen sc1
        s_add_u32 s43, s43, 1
        s_waitcnt vmcnt(0)
        v_readfirstlane_b32 s49, v4
        s_cmp_ge_u32 s43, 0x100000
        s_cbranch_scc1 {name}_x{cnt_off}
        s_cmp_lt_u32 s49, 7
        s_cbranch_scc1 {name}_l{cnt_off}''')
        k.label(f'{name}_x{cnt_off}')
        k('s_mov_b64 exec, -1')
        k.label(f'{name}_p{cnt_off}')
        k('s_barrier')
    def reduce4():
        k('s_nop 7')
        for i in range(1, 4):
            k(f'v_add_u32 v{4+i}, s{52+i}, v22')
            for f in range(4):
                k(f'ds_write_b128 v{4+i}, v[{ACC+(i*4+f)*4}:{ACC+(i*4+f)*4+3}] offset:{i*4096+f*1024}')
        k('v_add_u32 v4, s52, v22\ns_waitcnt lgkmcnt(0)\ns_barrier')
        for i in range(1, 4):
            for f in range(4):
                k(f'ds_read_b128 v[{ACC+i*16+f*4}:{ACC+i*16+f*4+3}], v4 offset:{i*4096+f*1024}')
        for i in range(1, 4):
            k(f's_waitcnt lgkmcnt({12-4*i})')
            for j in range(0, 16, 2):
                k(f'v_pk_add_f32 v[{ACC+j}:{ACC+j+1}], v[{ACC+j}:{ACC+j+1}], v[{ACC+i*16+j}:{ACC+i*16+j+1}]')
    A0 = lambda f, r: ACC + f*4 + r
    def add_bf16(src):
        for j in range(8):
            r = j >> 1; f = 2*(j & 1)
            k(f'''v_lshlrev_b32 v6, 16, v{src+j}
            v_and_b32 v7, 0xffff0000, v{src+j}
            v_add_f32 v{A0(f,r)}, v{A0(f,r)}, v6
            v_add_f32 v{A0(f+1,r)}, v{A0(f+1,r)}, v7''')
    def mf(c, a, b): return f'v_mfma_f32_16x16x32_bf16 {c}, {a}, {b}, {c}'
    R = lambda p, b: f'{p}[{b}:{b+3}]'
    def aload(j):
        o = [f's_add_u32 s30, s44, {j*4096}', f's_mov_b32 s43, {j*1024}']
        o += [f'buffer_load_dwordx4 {R("v", 128+j*16+4*f)}, v22, s[16:19], s30 offen offset:{f*1024}' for f in range(4)]
        o += [f'buffer_load_dwordx4 {R("v", 192+j*16+4*t)}, v{16+t}, s[12:15], s43 offen' for t in range(4)]
        return o
    for j in range(4): issue(('a', j), aload(j))
    issue('e', ['buffer_load_dwordx4 v[24:27], v21, s[24:27], 0 offen', 'buffer_load_dwordx4 v[28:31], v21, s[24:27], 0 offen offset:16'])
    for i in range(64): k(f'v_mov_b32 v{ACC+i}, 0')
    def hosted(start, tags_groups):
        k.host(start, [g for _, g in tags_groups])
        for t, g in tags_groups: q.extend([t]*sum(i.startswith('buffer_') for i in g))
        assert len(q) <= 63, len(q)
    for s in range(4):
        if s == 3: k(f's_cmp_ge_u32 s33, 2\ns_cbranch_scc1 {name}_a3')
        wait(('a', s))
        k.stamp(SV)
        m0 = k.mark()
        k('\n'.join(mf(R('v', ACC+(t*4+f)*4), R('v', 128+s*16+4*f), R('v', 192+s*16+4*t)) for t in range(4) for f in range(4)))
        if s < 3: hosted(m0, [(('w1', s), w1load(s))])
    k.label(f'{name}_a3')
    m0 = k.mark()
    reduce4()
    hosted(m0, [(('w1', s), w1load(s)) for s in (3, 4)])
    wait('e')
    add_bf16(24)
    for j in range(8):
        r = j >> 1; f = 2*(j & 1)
        k(f'v_cvt_pk_bf16_f32 v{48+j}, v{A0(f,r)}, v{A0(f+1,r)}')
    issue('st', ['buffer_store_dwordx4 v[48:51], v22, s[20:23], s56 offen sc1', 'buffer_store_dwordx4 v[52:55], v22, s[20:23], s56 offen offset:1024 sc1'])
    k.stamp(SV)
    publish(0)
    k.stamp(SV)
    k(f'''s_lshl_b32 s41, s34, 7
    v_lshlrev_b32 v6, 5, v3
    v_add_u32 v7, s39, v6
    v_add_u32 v6, s41, v6
    v_add_u32 v5, s46, v22''')
    X = ACC
    for s in range(14):
        if s and s % 4 == 0: k('v_add_u32 v5, 4096, v5')
        issue('h', [f'buffer_load_dwordx4 {R("v", X+4*s)}, v5, s[20:23], 0 offen offset:{1024*(s%4)} sc1'])
    issue('b', ['buffer_load_dwordx4 v[120:123], v6, s[76:79], 0 offen', 'buffer_load_dwordx4 v[124:127], v6, s[76:79], 0 offen offset:16',
                'buffer_load_dwordx4 v[56:59], v7, s[80:83], 0 offen', 'buffer_load_dwordx4 v[60:63], v7, s[80:83], 0 offen offset:16'])
    k('v_mov_b32 v28, 0x3f803f80\nv_mov_b32 v30, 0\nv_mov_b32 v31, 0\nv_mov_b32 v32, 0\nv_mov_b32 v33, 0')
    wait('b')
    k.stamp(SV)
    mLN = k.mark()
    for i in range(56):
        k(f'v_dot2c_f32_bf16 v{30+(i&1)}, v{X+i}, v28\nv_dot2c_f32_bf16 v{32+(i&1)}, v{X+i}, v{X+i}')
    k('s_nop 2\nv_add_f32 v30, v30, v31\nv_add_f32 v32, v32, v33\ns_nop 1')
    for sw in ('v_permlane16_swap_b32', 'v_permlane32_swap_b32'):
        k(f'''v_mov_b32 v31, v30
        v_mov_b32 v33, v32
        s_nop 1
        {sw} v31, v30
        {sw} v33, v32
        s_nop 1
        v_add_f32 v30, v30, v31
        v_add_f32 v32, v32, v33''')
    k(f'''v_mul_f32 v30, {hex(f2u(1/448))}, v30
    v_mul_f32 v32, {hex(f2u(1/448))}, v32
    v_fma_f32 v32, -v30, v30, v32
    v_max_f32 v32, 0, v32
    v_add_f32 v32, {hex(f2u(1e-5))}, v32
    v_rsq_f32 v34, v32
    s_nop 0
    v_mul_f32 v36, v30, v34
    v_sub_f32 v36, 0, v36
    v_mov_b32 v35, v34
    v_mov_b32 v37, v36
    s_mul_i32 s41, s33, 14336
    v_add_u32 v38, s41, v22''')
    for s in range(14):
        for j in range(4):
            r = X + 4*s + j; t = 40 + 2*(j & 1)
            k(f'''v_lshlrev_b32 v{t}, 16, v{r}
            v_and_b32 v{t+1}, 0xffff0000, v{r}
            v_pk_fma_f32 v[{t}:{t+1}], v[{t}:{t+1}], v[34:35], v[36:37]
            v_cvt_pk_bf16_f32 v{r}, v{t}, v{t+1}''')
        k(f'ds_write_b128 v38, {R("v", X+4*s)} offset:{1024*s}')
    hosted(mLN, [(('w1', s), w1load(s)) for s in range(5, 14)])
    k('s_waitcnt lgkmcnt(0)')
    k('s_barrier')
    k.stamp(SV)
    for j in range(8):
        r = j >> 1; f = 2*(j & 1)
        k(f'v_lshlrev_b32 v{ACC+f*4+r}, 16, v{120+j}\nv_and_b32 v{ACC+(f+1)*4+r}, 0xffff0000, v{120+j}')
    for tt in range(1, 4):
        for i in range(16): k(f'v_mov_b32 v{ACC+tt*16+i}, v{ACC+i}')
    BF = 128
    bread = lambda s: [f'ds_read_b128 {R("v", BF+(s&1)*16+t*4)}, v22 offset:{t*14336+s*1024}' for t in range(4)]
    k('\n'.join(bread(0)))
    for s in range(14):
        wait(('w1', s), ' lgkmcnt(0)')
        if s < 13: k('\n'.join(bread(s+1)))
        k('\n'.join(mf(R('v', ACC+(t*4+f)*4), R('a', s*16+4*f), R('v', BF+(s&1)*16+4*t)) for t in range(4) for f in range(4)))
        if s >= 8: hosted(k.mark()-16, [(('w2', s-8), w2load(s-8))])
    k('s_nop 7')
    k.stamp(SV)
    c0 = -2*math.log2(math.e)*math.sqrt(2/math.pi); c1 = c0*0.044715
    k(f'''v_mov_b32 v16, {hex(f2u(c0))}
    v_mov_b32 v17, v16
    v_mov_b32 v18, {hex(f2u(c1))}
    v_mov_b32 v19, v18
    v_mov_b32 v4, 1.0
    v_mov_b32 v5, 1.0
    s_lshl_b32 s40, s31, 2
    s_mul_i32 s40, s40, {56*1024}
    s_lshl_b32 s41, s34, 11
    s_add_u32 s43, s40, s41''')
    A = lambda tt, f, r: ACC + (tt*4+f)*4 + r
    for tt in range(4):
        b = ACC + tt*16
        mG = k.mark()
        for h in range(2):
            prs = [b + 8*h + 2*i for i in range(4)]; T = [24 + 2*i for i in range(4)]
            for p, t in zip(prs, T): k(f'v_pk_mul_f32 v[{t}:{t+1}], v[{p}:{p+1}], v[{p}:{p+1}]')
            for p, t in zip(prs, T): k(f'v_pk_fma_f32 v[{t}:{t+1}], v[{t}:{t+1}], v[18:19], v[16:17]')
            for p, t in zip(prs, T): k(f'v_pk_mul_f32 v[{t}:{t+1}], v[{t}:{t+1}], v[{p}:{p+1}]')
            for t in range(24, 32): k(f'v_exp_f32 v{t}, v{t}')
            for p, t in zip(prs, T): k(f'v_pk_add_f32 v[{t}:{t+1}], v[{t}:{t+1}], v[4:5]')
            for t in range(24, 32): k(f'v_rcp_f32 v{t}, v{t}')
            for p, t in zip(prs, T): k(f'v_pk_mul_f32 v[{p}:{p+1}], v[{p}:{p+1}], v[{t}:{t+1}]')
        hosted(mG, [(('w2', s), w2load(s)) for s in (6+2*tt, 7+2*tt)])
        for sp in range(2):
            t = 32 + 8*(tt & 1) + 4*sp
            for j in range(4):
                r = 2*sp + (j >> 1); f = 2*(j & 1)
                k(f'v_cvt_pk_bf16_f32 v{t+j}, v{A(tt,f,r)}, v{A(tt,f+1,r)}')
            if len(q) >= 62: wait(q[0])
            issue('st', [f'buffer_store_dwordx4 {R("v", t)}, v22, s[72:75], s43 offen offset:{sp*1024} sc1'])
        if tt < 3: k(f's_add_u32 s43, s43, {56*1024}')
    k.stamp(SV)
    publish(32*128)
    k.stamp(SV)
    D = 7
    def gload(j): return [f's_mov_b32 s43, {j*1024}'] + [f'buffer_load_dwordx4 {R("v", 128+(j%(D+1))*16+4*t)}, v{8+t}, s[72:75], s43 offen sc1' for t in range(4)]
    for j in range(3): issue(('g', j), gload(j))
    for i in range(64): k(f'v_mov_b32 v{ACC+i}, 0')
    nxt = 3
    for s in range(14):
        wait(('g', s))
        for _ in range(2):
            if nxt <= min(13, s + D): issue(('g', nxt), gload(nxt)); nxt += 1
        if s % 4 == 0: k.stamp(SV)
        k('\n'.join(mf(R('v', ACC+(t*4+f)*4), R('a', s*16+4*f), R('v', 128+(s%(D+1))*16+4*t)) for t in range(4) for f in range(4)))
    k.stamp(SV)
    reduce4()
    add_bf16(48); add_bf16(56)
    for j in range(8):
        r = j >> 1; f = 2*(j & 1)
        k(f'v_cvt_pk_bf16_f32 v{40+j}, v{A0(f,r)}, v{A0(f+1,r)}')
    k('buffer_store_dwordx4 v[40:43], v21, s[84:87], 0 offen\nbuffer_store_dwordx4 v[44:47], v21, s[84:87], 0 offen offset:16')
    k.stamp(SV, True)
    k.label(f'{name}_end')
    k('s_endpgm')
    return name, header(name) + '\n' + k.text(), desc(name, 256, 224), (224, 256, 65536)
```

```python
from common import *

def ln_gemm(mode):
    qkv = mode == 'qkv'
    name = 'k1_qkv_kernel' if qkv else 'k4_ffn1_kernel'
    k = K(name)
    D = 6
    ACC, RAW, AF, VA = 64, 128, 224, 8
    RS = 2688 if qkv else 3584
    NW = 224
    k(f'''s_cmp_ge_u32 s2, {NW}
    s_cbranch_scc1 {name}_end
    s_load_dwordx2 s[4:5], s[0:1], {ARG['x']}
    s_load_dwordx2 s[6:7], s[0:1], {ARG['wqkv'] if qkv else ARG['w1']}
    s_load_dwordx2 s[8:9], s[0:1], {ARG['ws']}
    s_load_dwordx2 s[10:11], s[0:1], {ARG['b1']}
    v_lshrrev_b32 v1, 6, v0
    v_and_b32 v0, 63, v0
    s_and_b32 s35, s2, 7
    s_lshr_b32 s36, s2, 3
    v_readfirstlane_b32 s33, v1
    s_mul_i32 s37, s36, 37
    s_lshr_b32 s37, s37, 8
    s_mul_i32 s38, s37, 7
    s_sub_u32 s32, s36, s38
    s_lshl_b32 s31, s35, 2
    s_add_u32 s31, s31, s37
    s_mov_b32 s28, {hex(PERM_LO)}
    s_mov_b32 s29, {hex(PERM_HI)}''')
    k.stamp(63)
    k(f'''s_mul_i32 s34, s32, {3 if qkv else 4}
    s_add_u32 s34, s34, s33
    v_and_b32 v2, 15, v0
    v_lshrrev_b32 v3, 4, v0''')
    if qkv:
        k('s_min_u32 s34, s34, 20')
    k(f'''s_lshl_b32 s39, s34, 7
    v_mul_u32_u24 v4, {RS*(8 if qkv else 16)}, v3
    v_lshl_add_u32 v4, v2, 3, v4
    v_add_u32 v{VA}, s39, v4''')
    for e in range(1, 8):
        k(f'v_add_u32 v{VA+e}, {RS*e}, v{VA}')
    if qkv:
        k(f'''v_lshrrev_b32 v5, 2, v0
        v_and_b32 v6, 3, v0
        s_lshl_b32 s40, s31, 2
        s_add_u32 s40, s40, s33
        s_mul_i32 s40, s40, {16*896}
        v_mul_u32_u24 v7, 896, v5
        v_lshl_add_u32 v7, v6, 4, v7
        v_add_u32 v7, s40, v7''')
    else:
        k(f'''s_lshl_b32 s40, s31, 2
        s_add_u32 s40, s40, s33
        s_mul_i32 s40, s40, {14*1024}
        v_lshlrev_b32 v7, 4, v0
        v_add_u32 v7, s40, v7''')
    k('s_waitcnt lgkmcnt(0)')
    k.stamp(63)
    if qkv:
        k.srd(12, 4, 2048*896)
        k.srd(16, 6, 448*2688)
        k.srd(20, 8, 0x600000, QF)
    else:
        k.srd(12, 8, 128*14*1024, HF)
        k.srd(16, 8, 392*4096, PW1)
        k.srd(20, 8, 128*56*1024, GF)
        k(f's_mul_i32 s44, s34, {14*4096}\nv_lshlrev_b32 v6, 4, v0')
        k.srd(24, 10, 1792*2)
        k(f'''s_lshl_b32 s41, s34, 7
        v_lshlrev_b32 v16, 5, v3
        v_add_u32 v16, s41, v16
        buffer_load_dwordx4 v[20:23], v16, s[24:27], 0 offen
        buffer_load_dwordx4 v[24:27], v16, s[24:27], 0 offen offset:16''')
    X = ACC
    for s in range(14):
        if qkv:
            k(f'buffer_load_dwordx4 v[{X+4*s}:{X+4*s+3}], v7, s[12:15], 0 offen offset:{64*s}')
        else:
            if s and s % 4 == 0: k('v_add_u32 v7, 4096, v7')
            k(f'buffer_load_dwordx4 v[{X+4*s}:{X+4*s+3}], v7, s[12:15], 0 offen offset:{1024*(s%4)}')
    def wrow(s):
        return (32*s if qkv else 64*(s >> 1) + 8*(s & 1))*RS
    def wload(s):
        if not qkv:
            return [f's_add_u32 s30, s44, {s*4096}'] + [f'buffer_load_dwordx4 a[{s*16+4*f}:{s*16+4*f+3}], v6, s[16:19], s30 offen offset:{f*1024}' for f in range(4)]
        o = [f's_mov_b32 s30, {wrow(s)}']
        for e in range(8):
            o.append(f'buffer_load_dwordx2 a[{s*16+2*e}:{s*16+2*e+1}], v{VA+e}, s[16:19], s30 offen')
        return o
    wq = []
    def w_issue(s): k('\n'.join(wload(s))); wq.append(s); assert len(wq) <= 7
    def w_wait(s):
        if s in wq:
            i = wq.index(s); k(f's_waitcnt vmcnt({8*(len(wq)-1-i)})'); del wq[:i+1]
    nbias = 0 if qkv else 2
    npre = 2 if qkv else 11
    if qkv: k(f's_cmp_eq_u32 s33, 3\ns_cbranch_scc1 {name}_now')
    for s in range(npre):
        k('\n'.join(wload(s)))
        if qkv: wq.append(s)
    k(f's_waitcnt vmcnt({(8 if qkv else 4)*npre})')
    if qkv:
        k(f's_branch {name}_ln')
        k.label(f'{name}_now')
        k('s_waitcnt vmcnt(0)')
        k.label(f'{name}_ln')
    k(f'''v_mov_b32 v28, 0x3f803f80
    v_mov_b32 v30, 0
    v_mov_b32 v31, 0
    v_mov_b32 v32, 0
    v_mov_b32 v33, 0''')
    k.stamp(63)
    def w_more(s, tag):
        k(f's_cmp_eq_u32 s33, 3\ns_cbranch_scc1 {name}_nw{tag}')
        if len(wq) >= 7: w_wait(wq[0])
        w_issue(s)
        k.label(f'{name}_nw{tag}')
    for i in range(56):
        if qkv and i in (0, 28): w_more(2 + i//28, f'd{i}')
        k(f'v_dot2c_f32_bf16 v{30+(i&1)}, v{X+i}, v28')
        k(f'v_dot2c_f32_bf16 v{32+(i&1)}, v{X+i}, v{X+i}')
    if not qkv:
        for s in range(11, 14): k('\n'.join(wload(s)))
    k('s_nop 2\nv_add_f32 v30, v30, v31\nv_add_f32 v32, v32, v33\ns_nop 1')
    if qkv:
        for p in ('[1,0,3,2]', '[2,3,0,1]'):
            k(f'''v_add_f32_dpp v30, v30, v30 quad_perm:{p} row_mask:0xf bank_mask:0xf
            v_add_f32_dpp v32, v32, v32 quad_perm:{p} row_mask:0xf bank_mask:0xf
            s_nop 1''')
    else:
        for sw in ('v_permlane16_swap_b32', 'v_permlane32_swap_b32'):
            k(f'''v_mov_b32 v31, v30
            v_mov_b32 v33, v32
            s_nop 1
            {sw} v31, v30
            {sw} v33, v32
            s_nop 1
            v_add_f32 v30, v30, v31
            v_add_f32 v32, v32, v33''')
    k(f'''v_mul_f32 v30, {hex(f2u(1/448))}, v30
    v_mul_f32 v32, {hex(f2u(1/448))}, v32
    v_fma_f32 v32, -v30, v30, v32
    v_max_f32 v32, 0, v32
    v_add_f32 v32, {hex(f2u(1e-5))}, v32
    v_rsq_f32 v34, v32
    s_nop 0
    v_mul_f32 v36, v30, v34
    v_sub_f32 v36, 0, v36
    v_mov_b32 v35, v34
    v_mov_b32 v37, v36''')
    if qkv:
        k(f'''v_lshlrev_b32 v38, 1, v6
        v_xor_b32 v38, v38, v5
        v_lshlrev_b32 v38, 4, v38
        v_lshl_add_u32 v38, v6, 8, v38''')
    else:
        k('v_lshlrev_b32 v38, 4, v0')
    k(f'''s_mul_i32 s41, s33, 14336
    v_add_u32 v38, s41, v38''')
    for s in range(14):
        for j in range(4):
            r = X + 4*s + j; t = 40 + 2*(j & 1)
            k(f'''v_lshlrev_b32 v{t}, 16, v{r}
            v_and_b32 v{t+1}, 0xffff0000, v{r}
            v_pk_fma_f32 v[{t}:{t+1}], v[{t}:{t+1}], v[34:35], v[36:37]
            v_cvt_pk_bf16_f32 v{r}, v{t}, v{t+1}''')
        k(f'ds_write_b128 v38, v[{X+4*s}:{X+4*s+3}] offset:{1024*s}')
        if qkv and s % 3 == 0: w_more(4 + s//3, f'n{s}')
    if qkv:
        k(f'''v_lshlrev_b32 v39, 1, v3
        v_xor_b32 v39, v39, v2
        v_lshlrev_b32 v39, 4, v39
        v_lshl_add_u32 v39, v3, 8, v39''')
    else:
        k('v_lshlrev_b32 v39, 4, v0')
    k.stamp(63)
    k('s_waitcnt lgkmcnt(0)\ns_barrier')
    k.stamp(63)
    if qkv:
        k(f's_cmp_eq_u32 s33, 3\ns_cbranch_scc1 {name}_pf')
    if qkv:
        for i in range(64): k(f'v_mov_b32 v{ACC+i}, 0')
    else:
        for j in range(8):
            r = j >> 1; f = 2*(j & 1)
            k(f'v_lshlrev_b32 v{ACC+f*4+r}, 16, v{20+j}\nv_and_b32 v{ACC+(f+1)*4+r}, 0xffff0000, v{20+j}')
        for tt in range(1, 4):
            for i in range(16): k(f'v_mov_b32 v{ACC+tt*16+i}, v{ACC+i}')
    BF = 128
    def bread(s):
        return [f'ds_read_b128 v[{BF+(s&1)*16+tt*4}:{BF+(s&1)*16+tt*4+3}], v39 offset:{tt*14336+s*1024}' for tt in range(4)]
    RW = 160
    def stage(s): return [f'v_accvgpr_read_b32 v{RW+i}, a{s*16+i}' for i in range(16)]
    wq0 = list(wq)
    def body(flip, tag):
        wq[:] = wq0
        k('\n'.join(bread(0)))
        w_wait(0)
        k('\n'.join(stage(0) + perm_ops(RW, AF, 28, 29)))
        for s in range(14):
            cur = s & 1
            if s < 13: w_wait(s+1)
            k('s_waitcnt lgkmcnt(0)')
            if s < 13: k('\n'.join(bread(s+1)))
            if s % 2 == 0: k.stamp(63)
            m = []
            for tt in range(4):
                for f in range(4):
                    a = f'v[{AF+cur*16+4*f}:{AF+cur*16+4*f+3}]'; b = f'v[{BF+cur*16+tt*4}:{BF+cur*16+tt*4+3}]'
                    c = f'v[{ACC+(tt*4+f)*4}:{ACC+(tt*4+f)*4+3}]'
                    m.append(f'v_mfma_f32_16x16x32_bf16 {c}, {b}, {a}, {c}' if flip else f'v_mfma_f32_16x16x32_bf16 {c}, {a}, {b}, {c}')
            fill = stage(s+1) + perm_ops(RW, AF + (1-cur)*16, 28, 29) if s < 13 else []
            k('\n'.join(interleave(m, fill)))
            if s + 9 <= 13:
                if len(wq) >= 7: w_wait(wq[0])
                w_issue(s + 9)
        k('s_nop 7')
        k.stamp(63)
    A = lambda tt, f, r: ACC + (tt*4+f)*4 + r
    if qkv:
        k(f's_cmp_ge_u32 s34, 14\ns_cbranch_scc1 {name}_v')
        body(False, 'qk')
        k(f'''s_cmp_ge_u32 s34, 7
        s_cselect_b32 s42, 7, 0
        s_cselect_b32 s43, {hex(KF)}, 0
        s_sub_u32 s42, s34, s42
        s_lshl_b32 s42, s42, 4
        s_lshl_b32 s44, s31, 12
        s_add_u32 s43, s43, s44
        v_lshl_add_u32 v16, v3, 2, s42''')
        for r in range(4):
            k(f'''v_add_u32 v17, {r}, v16
            v_mul_u32_u24 v18, 147, v17
            v_lshrrev_b32 v18, 10, v18
            v_mul_u32_u24 v19, 7, v18
            v_sub_u32 v19, v17, v19
            v_lshlrev_b32 v{20+r}, 17, v18
            v_lshrrev_b32 v17, 2, v19
            v_lshl_add_u32 v{20+r}, v17, 10, v{20+r}
            v_bfe_u32 v17, v19, 1, 1
            v_lshl_add_u32 v{20+r}, v17, 9, v{20+r}
            v_and_b32 v17, 1, v19
            v_lshl_add_u32 v{20+r}, v17, 3, v{20+r}
            v_lshl_add_u32 v{20+r}, v2, 4, v{20+r}''')
        sc = f2u(math.log2(math.e)/math.sqrt(28))
        k(f's_mov_b32 s45, {hex(sc)}\ns_cmp_ge_u32 s34, 7\ns_cbranch_scc1 {name}_nosc')
        for i in range(64): k(f'v_mul_f32 v{ACC+i}, s45, v{ACC+i}')
        k.label(f'{name}_nosc')
        n = 0
        for tt in range(4):
            for r in range(4):
                t = 24 + 2*(n % 8); n += 1
                k(f'''v_cvt_pk_bf16_f32 v{t}, v{A(tt,0,r)}, v{A(tt,1,r)}
                v_cvt_pk_bf16_f32 v{t+1}, v{A(tt,2,r)}, v{A(tt,3,r)}
                buffer_store_dwordx2 v[{t}:{t+1}], v{20+r}, s[20:23], s43 offen offset:{(tt>>1)*2048+(tt&1)*256}''')
        k.stamp(63, True)
        k('s_endpgm')
        k.label(f'{name}_v')
        body(True, 'v')
        k(f'''s_sub_u32 s42, s34, 14
        s_lshl_b32 s42, s42, 4
        s_lshl_b32 s43, s31, 12
        s_add_u32 s43, s43, {hex(VF)}
        v_add_u32 v17, s42, v2
        v_mul_u32_u24 v18, 147, v17
        v_lshrrev_b32 v18, 10, v18
        v_mul_u32_u24 v19, 7, v18
        v_sub_u32 v19, v17, v19
        v_lshlrev_b32 v20, 17, v18
        v_lshl_add_u32 v20, v19, 6, v20
        v_and_b32 v17, 1, v3
        v_lshl_add_u32 v20, v17, 9, v20
        v_lshrrev_b32 v17, 1, v3
        v_lshl_add_u32 v20, v17, 3, v20''')
        n = 0
        for tt in range(4):
            for f in range(4):
                t = 24 + 2*(n % 8); n += 1
                k(f'''v_cvt_pk_bf16_f32 v{t}, v{A(tt,f,0)}, v{A(tt,f,1)}
                v_cvt_pk_bf16_f32 v{t+1}, v{A(tt,f,2)}, v{A(tt,f,3)}
                buffer_store_dwordx2 v[{t}:{t+1}], v{20}, s[20:23], s43 offen offset:{f*16+(tt>>1)*2048+(tt&1)*1024}''')
    else:
        body(False, 'g')
        c0 = -2*math.log2(math.e)*math.sqrt(2/math.pi); c1 = c0*0.044715
        k(f'''v_mov_b32 v16, {hex(f2u(c0))}
        v_mov_b32 v17, v16
        v_mov_b32 v18, {hex(f2u(c1))}
        v_mov_b32 v19, v18
        v_mov_b32 v4, 1.0
        v_mov_b32 v5, 1.0
        s_lshl_b32 s40, s31, 2
        s_mul_i32 s40, s40, {56*1024}
        s_lshl_b32 s41, s34, 11
        s_add_u32 s43, s40, s41
        v_lshlrev_b32 v20, 4, v0''')
        for tt in range(4):
            b = ACC + tt*16
            for h in range(2):
                prs = [b + 8*h + 2*i for i in range(4)]
                T = [24 + 2*i for i in range(4)]
                for p, t in zip(prs, T): k(f'v_pk_mul_f32 v[{t}:{t+1}], v[{p}:{p+1}], v[{p}:{p+1}]')
                for p, t in zip(prs, T): k(f'v_pk_fma_f32 v[{t}:{t+1}], v[{t}:{t+1}], v[18:19], v[16:17]')
                for p, t in zip(prs, T): k(f'v_pk_mul_f32 v[{t}:{t+1}], v[{t}:{t+1}], v[{p}:{p+1}]')
                for t in range(24, 32): k(f'v_exp_f32 v{t}, v{t}')
                for p, t in zip(prs, T): k(f'v_pk_add_f32 v[{t}:{t+1}], v[{t}:{t+1}], v[4:5]')
                for t in range(24, 32): k(f'v_rcp_f32 v{t}, v{t}')
                for p, t in zip(prs, T): k(f'v_pk_mul_f32 v[{p}:{p+1}], v[{p}:{p+1}], v[{t}:{t+1}]')
            for sp in range(2):
                t = 32 + 8*(tt & 1) + 4*sp
                for j in range(4):
                    r = 2*sp + (j >> 1); f = 2*(j & 1)
                    k(f'v_cvt_pk_bf16_f32 v{t+j}, v{A(tt,f,r)}, v{A(tt,f+1,r)}')
                k(f'buffer_store_dwordx4 v[{t}:{t+3}], v20, s[20:23], s43 offen offset:{sp*1024}')
            if tt < 3: k(f's_add_u32 s43, s43, {56*1024}')
    k.stamp(63, True)
    k.label(f'{name}_end')
    k('s_endpgm')
    if qkv:
        k.label(f'{name}_pf')
        k(f'''s_load_dwordx2 s[4:5], s[0:1], {ARG['wo']}
        s_load_dwordx2 s[6:7], s[0:1], {ARG['w1']}
        s_load_dwordx2 s[10:11], s[0:1], {ARG['w2']}
        v_lshlrev_b32 v22, 4, v0
        s_waitcnt lgkmcnt(0)''')
        k.srd(20, 8, 0x1800000)
        k(f's_cmp_lg_u32 s2, 223\ns_cbranch_scc1 {name}_nz\nv_mov_b32 v24, 0\nv_mov_b32 v25, 0\nv_mov_b32 v26, 0\nv_mov_b32 v27, 0\ns_mov_b32 s45, 0x1700000')
        for i in range(8): k(f'buffer_store_dwordx4 v[24:27], v22, s[20:23], s45 offen\ns_add_u32 s45, s45, 1024')
        k.label(f'{name}_nz')
        for u in range(4):
            L = f'{name}_u{u}'
            k(f'''s_lshl_b32 s45, s2, 2
            s_add_u32 s45, s45, {u}
            s_cmp_ge_u32 s45, 882
            s_cbranch_scc1 {L}_done
            s_cmp_ge_u32 s45, 784
            s_cbranch_scc1 {L}_wo
            s_cmp_ge_u32 s45, 392
            s_cbranch_scc1 {L}_w2''')
            for tag, ptr, base, rs, rows, ns, dst, nat in (('w1', 6, 0, 3584, 448, 14, PW1, False), ('w2', 10, 392, 896, 1792, 56, PW2, False), ('wo', 4, 784, 896, 448, 14, PWO, True)):
                if tag != 'w1': k.label(f'{L}_{tag}')
                k.srd(16, ptr, rows*rs)
                k(f'''s_sub_u32 s46, s45, {base}
                s_mul_i32 s47, s46, {-(-65536//ns)}
                s_lshr_b32 s47, s47, 16
                s_mul_i32 s48, s47, {ns}
                s_sub_u32 s48, s46, s48
                s_lshl_b32 s49, s46, 12
                s_add_u32 s{50+u}, s49, {hex(dst)}
                s_lshl_b32 s47, s47, 7''')
                if nat: k(f's_mul_i32 s49, s48, {32*rs}')
                else: k(f's_lshr_b32 s49, s48, 1\ns_mul_i32 s49, s49, {64*rs}\ns_and_b32 s48, s48, 1\ns_mul_i32 s48, s48, {8*rs}\ns_add_u32 s49, s49, s48')
                k(f'''s_add_u32 s49, s49, s47
                v_mul_u32_u24 v4, {rs*(8 if nat else 16)}, v3
                v_lshl_add_u32 v4, v2, 3, v4''')
                for e in range(8):
                    k(f'buffer_load_dwordx2 v[{RAW+u*16+2*e}:{RAW+u*16+2*e+1}], v4, s[16:19], s49 offen')
                    if e < 7: k(f's_add_u32 s49, s49, {rs}')
                k(f's_branch {L}_done')
            k.label(f'{L}_done')
        for u in range(4):
            k(f's_lshl_b32 s45, s2, 2\ns_add_u32 s45, s45, {u}\ns_cmp_ge_u32 s45, 882\ns_cbranch_scc1 {name}_pfend')
            k(f's_waitcnt vmcnt({0 if u == 0 else 4})')
            k('\n'.join(perm_ops(RAW + u*16, ACC + u*16, 28, 29)))
            k('s_nop 1')
            for f in range(4):
                k(f'buffer_store_dwordx4 v[{ACC+u*16+4*f}:{ACC+u*16+4*f+3}], v22, s[20:23], s{50+u} offen offset:{f*1024}')
        k.label(f'{name}_pfend')
        k('s_endpgm')
    return name, header(name) + '\n' + k.text(), desc(name, 256, 224), (224, 256, 57344)
```

```python
from common import *

import os
NWV = int(os.environ.get('NWV', 4))
TPW = 64//NWV
def attn():
    name = 'k2_attn_kernel'
    k = K(name)
    Q, O, S, P, KB, VB, M = 16, 48, 112, 144, 160, 192, 224
    k(f'''s_cmp_ge_u32 s2, 256
    s_cbranch_scc1 {name}_end
    s_load_dwordx2 s[8:9], s[0:1], {ARG['ws']}
    v_lshrrev_b32 v1, 6, v0
    v_mov_b32 v15, v0
    v_and_b32 v0, 63, v0
    s_and_b32 s35, s2, 7
    s_lshr_b32 s36, s2, 3
    v_readfirstlane_b32 s33, v1
    s_lshr_b32 s37, s36, 4
    s_lshl_b32 s31, s35, 1
    s_add_u32 s31, s31, s37
    s_and_b32 s32, s36, 15
    v_lshlrev_b32 v2, 4, v0
    s_lshl_b32 s38, s31, 17
    s_lshl_b32 s39, s32, 13
    s_add_u32 s39, s39, s38
    s_mul_i32 s40, s33, {TPW*2048}
    s_add_u32 s40, s40, s38
    s_mov_b32 s42, 0x0fffffff
    s_mov_b32 s43, 0x0fffffff
    v_cmp_gt_u32 vcc, 32, v0
    v_cndmask_b32 v3, 0, -1, vcc
    s_mov_b32 s47, 0
    s_waitcnt lgkmcnt(0)''')
    k.stamp(14)
    k(f'''s_mul_i32 s37, s36, 37
    s_lshr_b32 s37, s37, 8
    s_mul_i32 s38, s37, 7
    s_sub_u32 s56, s36, s38
    s_lshl_b32 s56, s56, 2
    s_add_u32 s56, s56, s33
    s_mul_i32 s57, s56, {14*4096}''')
    k.srd(64, 8, 392*4096, PW1)
    k.srd(12, 8, 0x200000, QF)
    k.srd(16, 8, 0x200000, KF)
    k.srd(20, 8, 0x200000, VF)
    k.srd(24, 8, 128*14336, OF)
    for c in range(4):
        for m in range(2):
            if c == 2 and m == 0: k('s_add_u32 s39, s39, 4096')
            k(f'buffer_load_dwordx4 v[{Q+(c*2+m)*4}:{Q+(c*2+m)*4+3}], v2, s[12:15], s39 offen offset:{(c&1)*2048+m*1024}')
    for i in range(32): k(f'v_mov_b32 v{VB+i}, 0x3f803f80')
    def kv(buf, sreg):
        return [f'buffer_load_dwordx4 v[{KB+buf*8}:{KB+buf*8+3}], v2, s[16:19], {sreg} offen',
                f'buffer_load_dwordx4 v[{KB+buf*8+4}:{KB+buf*8+7}], v2, s[16:19], {sreg} offen offset:1024',
                's_mov_b64 exec, s[42:43]',
                f'buffer_load_dwordx4 v[{VB+buf*8}:{VB+buf*8+3}], v2, s[20:23], {sreg} offen',
                f'buffer_load_dwordx4 v[{VB+buf*8+4}:{VB+buf*8+7}], v2, s[20:23], {sreg} offen offset:1024',
                's_mov_b64 exec, -1']
    k('s_mov_b32 s41, s40')
    for j in range(3):
        k('\n'.join(kv(j, 's41')))
        k('s_add_u32 s41, s41, 2048')
    for i in range(64): k(f'v_mov_b32 v{O+i}, 0')
    for i in range(16): k(f'v_mov_b32 v{P+i}, 0')
    def kmask(buf): return [f'v_and_b32 v{KB+buf*8+6}, v3, v{KB+buf*8+6}', f'v_and_b32 v{KB+buf*8+7}, v3, v{KB+buf*8+7}']
    def qk(buf, c, sb):
        d = f'v[{S+sb*16}:{S+sb*16+15}]'
        return [f'v_mfma_f32_32x32x16_bf16 {d}, v[{KB+buf*8}:{KB+buf*8+3}], v[{Q+c*8}:{Q+c*8+3}], 0',
                f'v_mfma_f32_32x32x16_bf16 {d}, v[{KB+buf*8+4}:{KB+buf*8+7}], v[{Q+c*8+4}:{Q+c*8+7}], {d}']
    def pv(buf, c, pb):
        d = f'v[{O+c*16}:{O+c*16+15}]'
        return [f'v_mfma_f32_32x32x16_bf16 {d}, v[{VB+buf*8}:{VB+buf*8+3}], v[{P+pb*8}:{P+pb*8+3}], {d}',
                f'v_mfma_f32_32x32x16_bf16 {d}, v[{VB+buf*8+4}:{VB+buf*8+7}], v[{P+pb*8+4}:{P+pb*8+7}], {d}']
    k.stamp(14)
    k('s_waitcnt vmcnt(8)')
    k.stamp(14)
    for c in range(4):
        k(f'v_and_b32 v{Q+c*8+6}, v3, v{Q+c*8+6}\nv_and_b32 v{Q+c*8+7}, v3, v{Q+c*8+7}')
    k('\n'.join(kmask(0)))
    k('s_nop 1')
    k('\n'.join(qk(0, 0, 0)))
    k('s_nop 7\ns_nop 3')
    q = ['kv0']*4 + ['kv1']*4 + ['kv2']*4
    del q[:4]
    for j in range(TPW):
        jj = j % 4
        for c in range(4):
            sb = c & 1
            nb = (jj + (c == 3)) % 4
            pre = []
            if c == 3 and j < TPW-1:
                last = max(i for i, t in enumerate(q) if t == f'kv{j+1}')
                pre = [f's_waitcnt vmcnt({len(q)-1-last})'] + kmask(nb); del q[:last+1]
            a = qk(nb, (c+1) & 3, 1-sb)
            b = pv((jj - (c == 0)) % 4, (c-1) & 3, 1-sb)
            ex = [f'v_exp_f32 v{S+sb*16+i}, v{S+sb*16+i}' for i in range(16)]
            cv = [f'v_cvt_pk_bf16_f32 v{P+sb*8+i}, v{S+sb*16+2*i}, v{S+sb*16+2*i+1}' for i in range(8)]
            if j == TPW-1 and c == 3: a = ['s_nop 0', 's_nop 0']
            seq = pre + ex[0:2] + [a[0]] + ex[2:7] + [cv[0], cv[1], a[1]] + ex[7:11] + [cv[2], cv[3], cv[4], b[0]] + ex[11:16] + [cv[5], cv[6], b[1], cv[7]]
            if c == 1 and j + 3 < TPW:
                seq = seq[:3] + kv((jj+3) % 4, 's41') + ['s_add_u32 s41, s41, 2048'] + seq[3:]; q += [f'kv{j+3}']*4
            if c == 2 and j < 14:
                w = [f's_add_u32 s30, s57, {j*4096}'] + [f'buffer_load_dwordx4 a[{j*16+4*f}:{j*16+4*f+3}], v2, s[64:67], s30 offen offset:{f*1024}' for f in range(4)]
                seq = seq[:3] + w + seq[3:]; q += ['w']*4
            k('\n'.join(seq))
    k('s_nop 1')
    k('\n'.join(pv(3, 3, 1)))
    k.stamp(14)
    k.label(f'{name}_comb')
    k(f'''v_lshrrev_b32 v4, 5, v0
    v_and_b32 v5, 31, v0
    v_lshlrev_b32 v4, 11, v4
    v_lshl_add_u32 v4, v5, 4, v4
    s_lshl_b32 s45, s33, 14
    v_add_u32 v4, s45, v4
    s_nop 7
    s_nop 7''')
    for c in range(4):
        for j in range(4):
            k(f'ds_write_b128 v4, v[{O+c*16+4*j}:{O+c*16+4*j+3}] offset:{j*4096+c*512}')
    k(f'''v_and_b32 v5, 127, v15
    v_lshlrev_b32 v6, 4, v5
    v_xor_b32 v7, 1024, v6
    v_add_u32 v12, 0x10000, v6
    v_add_u32 v13, 0x10000, v7
    s_waitcnt lgkmcnt(0)
    s_barrier''')
    k.stamp(14)
    NG = 8//(NWV//2)
    LS = S + 16
    for w in range(NWV):
        k(f'ds_read_b32 v{S+w}, v6 offset:{w*16384+7*2048}' if w < 4 else f'ds_read_b32 v{S+w}, v12 offset:{(w-4)*16384+7*2048}')
    for w in range(NWV):
        k(f'ds_read_b32 v{LS+w}, v7 offset:{w*16384+7*2048}' if w < 4 else f'ds_read_b32 v{LS+w}, v13 offset:{(w-4)*16384+7*2048}')
    k(f'''s_lshr_b32 s46, s33, 1
    s_lshl_b32 s45, s46, 11
    v_add_u32 v6, s45, v6
    v_add_u32 v12, s45, v12
    s_waitcnt lgkmcnt(0)''')
    for i in range(NG):
        for w in range(NWV):
            r = KB + (i*NWV+w)*4
            k(f'ds_read_b128 v[{r}:{r+3}], v{6 if w < 4 else 12} offset:{(w&3)*16384+i*(NWV//2)*2048}')
    for w in range(1, NWV): k(f'v_add_f32 v{S}, v{S}, v{S+w}\nv_add_f32 v{LS}, v{LS}, v{LS+w}')
    k(f'''v_mov_b32 v8, v{S}
    v_mov_b32 v{S}, v{LS}
    s_cmp_lg_u32 s47, 0
    s_cbranch_scc1 {name}_ok
    v_mov_b32 v9, {hex(f2u(2.0**-60))}
    v_mov_b32 v10, {hex(f2u(2.0**60))}
    v_cmp_ge_f32 s[48:49], v8, v9
    v_cmp_le_f32 s[50:51], v8, v10
    v_cmp_ge_f32 s[52:53], v{S}, v9
    v_cmp_le_f32 s[54:55], v{S}, v10
    s_and_b64 s[48:49], s[48:49], s[50:51]
    s_and_b64 s[52:53], s[52:53], s[54:55]
    s_and_b64 s[48:49], s[48:49], s[52:53]
    s_cmp_eq_u64 s[48:49], -1
    s_cbranch_scc0 {name}_slow''')
    k.label(f'{name}_ok')
    k(f'''v_rcp_f32 v8, v8
    v_lshrrev_b32 v9, 4, v5
    v_mul_u32_u24 v9, 14336, v9
    v_and_b32 v10, 15, v5
    v_lshl_add_u32 v9, v10, 4, v9
    s_mul_i32 s48, s32, {8*14336}
    s_mul_i32 s49, s31, 7
    s_add_u32 s49, s49, s46
    s_waitcnt lgkmcnt(0)''')
    for i in range(NG):
        if i == NG-1: k.stamp(14, True)
        if i == NG-1: k(f's_cmp_eq_u32 s46, {NWV//2-1}\ns_cbranch_scc1 {name}_pub')
        r = KB + i*NWV*4
        for w in range(1, NWV):
            k(f'v_pk_add_f32 v[{r}:{r+1}], v[{r}:{r+1}], v[{r+4*w}:{r+4*w+1}]\nv_pk_add_f32 v[{r+2}:{r+3}], v[{r+2}:{r+3}], v[{r+4*w+2}:{r+4*w+3}]')
        k(f'''v_mul_f32 v{r}, v8, v{r}
        v_mul_f32 v{r+1}, v8, v{r+1}
        v_mul_f32 v{r+2}, v8, v{r+2}
        v_mul_f32 v{r+3}, v8, v{r+3}
        v_cvt_pk_bf16_f32 v{r+4}, v{r}, v{r+1}
        v_cvt_pk_bf16_f32 v{r+5}, v{r+2}, v{r+3}
        s_lshr_b32 s50, s49, 3
        s_lshl_b32 s50, s50, 10
        s_bfe_u32 s51, s49, 0x20001
        s_lshl_b32 s51, s51, 8
        s_and_b32 s52, s49, 1
        s_lshl_b32 s52, s52, 3
        s_add_u32 s50, s50, s51
        s_add_u32 s50, s50, s52
        s_add_u32 s50, s50, s48
        buffer_store_dwordx2 v[{r+4}:{r+5}], v9, s[24:27], s50 offen sc1
        s_add_u32 s49, s49, {NWV//2}''')
    k(f's_branch {name}_pub')
    k.label(f'{name}_slow')
    k('s_waitcnt lgkmcnt(0) vmcnt(0)\ns_barrier\ns_mov_b32 s47, 1\ns_mov_b32 s41, s40\ns_mov_b32 s44, 0')
    for i in range(64): k(f'v_mov_b32 v{O+i}, 0')
    for i in range(32): k(f'v_mov_b32 v{VB+i}, 0x3f803f80')
    for c in range(4): k(f'v_mov_b32 v{M+c}, {hex(f2u(-3.0e38))}')
    k.label(f'{name}_sloop')
    k('\n'.join(kv(0, 's41')))
    k('s_add_u32 s41, s41, 2048\ns_waitcnt vmcnt(0)')
    k('\n'.join(kmask(0)))
    for c in range(4):
        k('s_nop 1')
        k('\n'.join(qk(0, c, 0)))
        k('s_nop 7\ns_nop 7')
        k(f'v_max_f32 v4, v{S}, v{S+1}')
        for i in range(2, 16, 2): k(f'v_max3_f32 v4, v4, v{S+i}, v{S+i+1}')
        k(f'''v_mov_b32 v5, v4
        s_nop 1
        v_permlane32_swap_b32 v5, v4
        s_nop 1
        v_max3_f32 v4, v4, v5, v{M+c}
        v_sub_f32 v5, v{M+c}, v4
        v_exp_f32 v5, v5
        v_mov_b32 v{M+c}, v4''')
        for i in range(16): k(f'v_mul_f32 v{O+c*16+i}, v5, v{O+c*16+i}')
        for i in range(16): k(f'v_sub_f32 v{S+i}, v{S+i}, v4')
        for i in range(16): k(f'v_exp_f32 v{S+i}, v{S+i}')
        k('s_nop 0')
        for i in range(8): k(f'v_cvt_pk_bf16_f32 v{P+i}, v{S+2*i}, v{S+2*i+1}')
        k('s_nop 1')
        k('\n'.join(pv(0, c, 0)))
        k('s_nop 7\ns_nop 7')
    k(f'''s_add_u32 s44, s44, 1
    s_cmp_lt_u32 s44, {TPW}
    s_cbranch_scc1 {name}_sloop
    v_and_b32 v5, 31, v0
    v_lshlrev_b32 v5, 2, v5
    v_add_u32 v5, {NWV*16384}, v5
    s_lshl_b32 s45, s33, 9
    v_add_u32 v4, s45, v5''')
    for c in range(4): k(f'ds_write_b32 v4, v{M+c} offset:{c*128}')
    return k, name, (Q, O, S, P, KB, VB, M)

def attn_full():
    k, name, (Q, O, S, P, KB, VB, M) = attn()
    k('s_waitcnt lgkmcnt(0)\ns_barrier')
    for c in range(4):
        for w in range(NWV):
            k(f'ds_read_b32 v{KB+c*NWV+w}, v5 offset:{w*512+c*128}')
    k('s_waitcnt lgkmcnt(0)\ns_barrier')
    for c in range(4):
        k(f'v_max_f32 v4, v{KB+c*NWV}, v{KB+c*NWV+1}')
        for w in range(2, NWV, 2): k(f'v_max3_f32 v4, v4, v{KB+c*NWV+w}, v{KB+c*NWV+w+1}')
        k(f'''v_sub_f32 v4, v{M+c}, v4
        v_exp_f32 v4, v4
        s_nop 0''')
        for i in range(16): k(f'v_mul_f32 v{O+c*16+i}, v4, v{O+c*16+i}')
    k(f's_branch {name}_comb')
    k.label(f'{name}_pub')
    from fused import fused, CNT
    k.srd(4, 8, 96*128, CNT)
    k(f'''s_waitcnt vmcnt(0)
    s_barrier
    s_cmp_lg_u32 s33, 0
    s_cbranch_scc1 {name}_pub2
    s_lshl_b32 s42, s32, 7
    s_add_u32 s42, s42, {64*128}
    v_mov_b32 v4, 1
    v_mov_b32 v5, 0
    s_mov_b64 exec, 1
    buffer_atomic_add v4, v5, s[4:7], s42 offen sc1
    s_mov_b64 exec, -1''')
    k.label(f'{name}_pub2')
    k(f's_cmp_ge_u32 s36, 28\ns_cbranch_scc1 {name}_end')
    mlp = fused(merged=True)
    txt = k.text() + '\n' + mlp + f'\n{name}_end:\n    s_endpgm'
    return name, header(name) + '\n' + txt, desc(name, 256, 224), (256, 64*NWV, NWV*16384 + 4096)
```

```python
from common import *
CNT = 0x1700000

def fused(merged=True):
    name = 'k3_mlp_kernel'
    k = K(name); SV = 15
    ACC = 64
    q = []
    def issue(tag, ins):
        k('\n'.join(ins)); q.extend([tag]*sum(i.startswith('buffer_') for i in ins))
        assert len(q) <= 63, len(q)
    def wait(tag, extra=''):
        idx = [i for i, t in enumerate(q) if t == tag]
        if not idx:
            if extra: k('s_waitcnt' + extra)
            return
        k(f's_waitcnt vmcnt({len(q)-1-idx[-1]}){extra}'); del q[:idx[-1]+1]
    def drain(): k('s_waitcnt vmcnt(0)'); q.clear()
    k(f'''s_load_dwordx2 s[4:5], s[0:1], {ARG['x']}
    s_load_dwordx2 s[6:7], s[0:1], {ARG['b1']}
    s_load_dwordx2 s[8:9], s[0:1], {ARG['ws']}
    s_load_dwordx2 s[60:61], s[0:1], {ARG['b2']}
    s_load_dwordx2 s[62:63], s[0:1], {ARG['out']}
    s_mul_i32 s37, s36, 37
    s_lshr_b32 s37, s37, 8
    s_mul_i32 s38, s37, 7
    s_sub_u32 s32, s36, s38
    s_lshl_b32 s31, s35, 2
    s_add_u32 s31, s31, s37
    v_and_b32 v2, 15, v0
    v_lshrrev_b32 v3, 4, v0
    v_lshlrev_b32 v22, 4, v0
    s_lshl_b32 s39, s32, 7''')
    k.stamp(SV)
    k(f'''s_lshl_b32 s40, s33, 2
    s_cmp_eq_u32 s33, 3
    s_cselect_b32 s41, 1, 0
    s_sub_u32 s40, s40, s41
    s_lshl_b32 s45, s31, 2''')
    for tt in range(4):
        k(f'''s_add_u32 s42, s33, {tt}
        s_and_b32 s42, s42, 3
        s_lshl_b32 s{52+tt}, s42, 14
        s_add_u32 s42, s42, s45
        s_mul_i32 s43, s42, 14
        s_add_u32 s43, s43, s40
        s_lshl_b32 s43, s43, 10
        v_add_u32 v{16+tt}, s43, v22
        s_mul_i32 s43, s42, 56
        s_mul_i32 s44, s33, 14
        s_add_u32 s43, s43, s44
        s_lshl_b32 s43, s43, 10
        v_add_u32 v{8+tt}, s43, v22''')
    k(f'''s_mul_i32 s44, s32, 14
    s_add_u32 s44, s44, s40
    s_lshl_b32 s44, s44, 12
    s_add_u32 s45, s45, s33
    s_mul_i32 s46, s45, {14*1024}
    s_lshl_b32 s47, s32, 11
    s_add_u32 s56, s46, s47
    s_lshl_b32 s48, s45, 4
    v_add_u32 v21, s48, v2
    v_mul_u32_u24 v21, 896, v21
    v_lshl_add_u32 v21, v3, 5, v21
    v_add_u32 v21, s39, v21
    s_lshl_b32 s34, s32, 2
    s_add_u32 s34, s34, s33
    s_mul_i32 s57, s34, {14*4096}
    s_mul_i32 s58, s32, 56
    s_mul_i32 s59, s33, 14
    s_add_u32 s58, s58, s59
    s_lshl_b32 s58, s58, 12
    s_waitcnt lgkmcnt(0)''')
    k.srd(12, 8, 128*14*1024, OF); k.srd(16, 8, 98*4096, PWO); k.srd(20, 8, 128*14*1024, HF)
    k.srd(24, 4, 2048*896); k.srd(64, 8, 392*4096, PW1); k.srd(68, 8, 392*4096, PW2)
    k.srd(72, 8, 128*56*1024, GF); k.srd(76, 6, 1792*2); k.srd(80, 60, 896); k.srd(84, 62, 2048*896)
    k.srd(4, 8, 96*128, CNT)
    def w1load(s): return [f's_add_u32 s30, s57, {s*4096}'] + [f'buffer_load_dwordx4 a[{s*16+4*f}:{s*16+4*f+3}], v22, s[64:67], s30 offen offset:{f*1024}' for f in range(4)]
    def w2load(s): return [f's_add_u32 s30, s58, {s*4096}'] + [f'buffer_load_dwordx4 a[{s*16+4*f}:{s*16+4*f+3}], v22, s[68:71], s30 offen offset:{f*1024}' for f in range(4)]
    def publish(cnt_off, extra=()):
        drain()
        k(f'''s_barrier
        s_cmp_lg_u32 s33, 0
        s_cbranch_scc1 {name}_p{cnt_off}
        s_lshl_b32 s42, s31, 7
        s_add_u32 s42, s42, {cnt_off}
        v_mov_b32 v4, 1
        v_mov_b32 v5, 0
        s_mov_b64 exec, 1
        buffer_atomic_add v4, v5, s[4:7], s42 offen sc1
        s_mov_b64 exec, -1''')
        for t, g in extra: k('\n'.join(g))
        k('s_mov_b64 exec, 1\ns_mov_b32 s43, 0')
        k.label(f'{name}_l{cnt_off}')
        k(f'''buffer_load_dword v4, v5, s[4:7], s42 offen sc1
        s_add_u32 s43, s43, 1
        s_waitcnt vmcnt(0)
        v_readfirstlane_b32 s49, v4
        s_cmp_ge_u32 s43, 0x100000
        s_cbranch_scc1 {name}_x{cnt_off}
        s_cmp_lt_u32 s49, 7
        s_cbranch_scc1 {name}_l{cnt_off}''')
        k.label(f'{name}_x{cnt_off}')
        k('s_mov_b64 exec, -1')
        if extra:
            k(f's_branch {name}_q{cnt_off}')
        k.label(f'{name}_p{cnt_off}')
        for t, g in extra: issue(t, g)
        if extra: k.label(f'{name}_q{cnt_off}')
        k('s_barrier')
    def reduce4():
        k('s_nop 7')
        for i in range(1, 4):
            k(f'v_add_u32 v{4+i}, s{52+i}, v22')
            for f in range(4):
                k(f'ds_write_b128 v{4+i}, v[{ACC+(i*4+f)*4}:{ACC+(i*4+f)*4+3}] offset:{i*4096+f*1024}')
        k('v_add_u32 v4, s52, v22\ns_waitcnt lgkmcnt(0)\ns_barrier')
        for i in range(1, 4):
            for f in range(4):
                k(f'ds_read_b128 v[{ACC+i*16+f*4}:{ACC+i*16+f*4+3}], v4 offset:{i*4096+f*1024}')
        for i in range(1, 4):
            k(f's_waitcnt lgkmcnt({12-4*i})')
            for j in range(0, 16, 2):
                k(f'v_pk_add_f32 v[{ACC+j}:{ACC+j+1}], v[{ACC+j}:{ACC+j+1}], v[{ACC+i*16+j}:{ACC+i*16+j+1}]')
    A0 = lambda f, r: ACC + f*4 + r
    def add_bf16(src):
        for j in range(8):
            r = j >> 1; f = 2*(j & 1)
            k(f'''v_lshlrev_b32 v6, 16, v{src+j}
            v_and_b32 v7, 0xffff0000, v{src+j}
            v_add_f32 v{A0(f,r)}, v{A0(f,r)}, v6
            v_add_f32 v{A0(f+1,r)}, v{A0(f+1,r)}, v7''')
    def mf(c, a, b): return f'v_mfma_f32_16x16x32_bf16 {c}, {a}, {b}, {c}'
    R = lambda p, b: f'{p}[{b}:{b+3}]'
    def wload_a(j): return [f's_add_u32 s30, s44, {j*4096}'] + [f'buffer_load_dwordx4 {R("v", 128+j*16+4*f)}, v22, s[16:19], s30 offen offset:{f*1024}' for f in range(4)]
    def oload_a(j): return [f's_mov_b32 s43, {j*1024}'] + [f'buffer_load_dwordx4 {R("v", 192+j*16+4*t)}, v{16+t}, s[12:15], s43 offen sc1' for t in range(4)]
    for j in range(4): issue(('aw', j), wload_a(j))
    issue('e', ['buffer_load_dwordx4 v[24:27], v21, s[24:27], 0 offen', 'buffer_load_dwordx4 v[28:31], v21, s[24:27], 0 offen offset:16'])
    k(f'''s_cmp_lg_u32 s33, 0
    s_cbranch_scc1 {name}_ow
    s_lshr_b32 s42, s31, 1
    s_lshl_b32 s42, s42, 7
    s_add_u32 s42, s42, {64*128}
    v_mov_b32 v5, 0
    s_mov_b64 exec, 1
    s_mov_b32 s43, 0''')
    k.label(f'{name}_ol')
    k(f'''buffer_load_dword v4, v5, s[4:7], s42 offen sc1
    s_add_u32 s43, s43, 1
    s_waitcnt vmcnt(0)
    v_readfirstlane_b32 s49, v4
    s_cmp_ge_u32 s43, 0x100000
    s_cbranch_scc1 {name}_ox
    s_cmp_lt_u32 s49, 16
    s_cbranch_scc1 {name}_ol''')
    k.label(f'{name}_ox')
    k('s_mov_b64 exec, -1')
    k.label(f'{name}_ow')
    k('s_barrier')
    k.stamp(SV)
    for j in range(4): issue(('a', j), oload_a(j))
    for i in range(64): k(f'v_mov_b32 v{ACC+i}, 0')
    def hosted(start, tags_groups):
        k.host(start, [g for _, g in tags_groups])
        for t, g in tags_groups: q.extend([t]*sum(i.startswith('buffer_') for i in g))
        assert len(q) <= 63, len(q)
    for s in range(4):
        if s == 3: k(f's_cmp_ge_u32 s33, 2\ns_cbranch_scc1 {name}_a3')
        wait(('a', s))
        k.stamp(SV)
        m0 = k.mark()
        k('\n'.join(mf(R('v', ACC+(t*4+f)*4), R('v', 128+s*16+4*f), R('v', 192+s*16+4*t)) for t in range(4) for f in range(4)))
    k.label(f'{name}_a3')
    m0 = k.mark()
    reduce4()
    wait('e')
    add_bf16(24)
    for j in range(8):
        r = j >> 1; f = 2*(j & 1)
        k(f'v_cvt_pk_bf16_f32 v{48+j}, v{A0(f,r)}, v{A0(f+1,r)}')
    issue('st', ['buffer_store_dwordx4 v[48:51], v22, s[20:23], s56 offen sc1', 'buffer_store_dwordx4 v[52:55], v22, s[20:23], s56 offen offset:1024 sc1'])
    k.stamp(SV)
    publish(0)
    k.stamp(SV)
    k(f'''s_lshl_b32 s41, s34, 7
    v_lshlrev_b32 v6, 5, v3
    v_add_u32 v7, s39, v6
    v_add_u32 v6, s41, v6
    v_add_u32 v5, s46, v22''')
    X = ACC
    for s in range(14):
        if s and s % 4 == 0: k('v_add_u32 v5, 4096, v5')
        issue('h', [f'buffer_load_dwordx4 {R("v", X+4*s)}, v5, s[20:23], 0 offen offset:{1024*(s%4)} sc1'])
    issue('b', ['buffer_load_dwordx4 v[120:123], v6, s[76:79], 0 offen', 'buffer_load_dwordx4 v[124:127], v6, s[76:79], 0 offen offset:16',
                'buffer_load_dwordx4 v[56:59], v7, s[80:83], 0 offen', 'buffer_load_dwordx4 v[60:63], v7, s[80:83], 0 offen offset:16'])
    k('v_mov_b32 v28, 0x3f803f80\nv_mov_b32 v30, 0\nv_mov_b32 v31, 0\nv_mov_b32 v32, 0\nv_mov_b32 v33, 0')
    wait('b')
    k.stamp(SV)
    mLN = k.mark()
    for i in range(56):
        k(f'v_dot2c_f32_bf16 v{30+(i&1)}, v{X+i}, v28\nv_dot2c_f32_bf16 v{32+(i&1)}, v{X+i}, v{X+i}')
    k('s_nop 2\nv_add_f32 v30, v30, v31\nv_add_f32 v32, v32, v33\ns_nop 1')
    for sw in ('v_permlane16_swap_b32', 'v_permlane32_swap_b32'):
        k(f'''v_mov_b32 v31, v30
        v_mov_b32 v33, v32
        s_nop 1
        {sw} v31, v30
        {sw} v33, v32
        s_nop 1
        v_add_f32 v30, v30, v31
        v_add_f32 v32, v32, v33''')
    k(f'''v_mul_f32 v30, {hex(f2u(1/448))}, v30
    v_mul_f32 v32, {hex(f2u(1/448))}, v32
    v_fma_f32 v32, -v30, v30, v32
    v_max_f32 v32, 0, v32
    v_add_f32 v32, {hex(f2u(1e-5))}, v32
    v_rsq_f32 v34, v32
    s_nop 0
    v_mul_f32 v36, v30, v34
    v_sub_f32 v36, 0, v36
    v_mov_b32 v35, v34
    v_mov_b32 v37, v36
    s_mul_i32 s41, s33, 14336
    v_add_u32 v38, s41, v22''')
    for s in range(14):
        for j in range(4):
            r = X + 4*s + j; t = 40 + 2*(j & 1)
            k(f'''v_lshlrev_b32 v{t}, 16, v{r}
            v_and_b32 v{t+1}, 0xffff0000, v{r}
            v_pk_fma_f32 v[{t}:{t+1}], v[{t}:{t+1}], v[34:35], v[36:37]
            v_cvt_pk_bf16_f32 v{r}, v{t}, v{t+1}''')
        k(f'ds_write_b128 v38, {R("v", X+4*s)} offset:{1024*s}')
    k('s_waitcnt lgkmcnt(0)')
    k('s_barrier')
    k.stamp(SV)
    for j in range(8):
        r = j >> 1; f = 2*(j & 1)
        k(f'v_lshlrev_b32 v{ACC+f*4+r}, 16, v{120+j}\nv_and_b32 v{ACC+(f+1)*4+r}, 0xffff0000, v{120+j}')
    for tt in range(1, 4):
        for i in range(16): k(f'v_mov_b32 v{ACC+tt*16+i}, v{ACC+i}')
    BF = 128
    bread = lambda s: [f'ds_read_b128 {R("v", BF+(s&1)*16+t*4)}, v22 offset:{t*14336+s*1024}' for t in range(4)]
    k('\n'.join(bread(0)))
    for s in range(14):
        wait(('w1', s), ' lgkmcnt(0)')
        if s < 13: k('\n'.join(bread(s+1)))
        k('\n'.join(mf(R('v', ACC+(t*4+f)*4), R('a', s*16+4*f), R('v', BF+(s&1)*16+4*t)) for t in range(4) for f in range(4)))
        if s >= 1: hosted(k.mark()-16, [(('w2', s-1), w2load(s-1))])
    k('s_nop 7')
    issue(('w2', 13), w2load(13))
    k.stamp(SV)
    c0 = -2*math.log2(math.e)*math.sqrt(2/math.pi); c1 = c0*0.044715
    k(f'''v_mov_b32 v16, {hex(f2u(c0))}
    v_mov_b32 v17, v16
    v_mov_b32 v18, {hex(f2u(c1))}
    v_mov_b32 v19, v18
    v_mov_b32 v4, 1.0
    v_mov_b32 v5, 1.0
    s_lshl_b32 s40, s31, 2
    s_mul_i32 s40, s40, {56*1024}
    s_lshl_b32 s41, s34, 11
    s_add_u32 s43, s40, s41''')
    A = lambda tt, f, r: ACC + (tt*4+f)*4 + r
    for tt in range(4):
        b = ACC + tt*16
        mG = k.mark()
        for h in range(2):
            prs = [b + 8*h + 2*i for i in range(4)]; T = [24 + 2*i for i in range(4)]
            for p, t in zip(prs, T): k(f'v_pk_mul_f32 v[{t}:{t+1}], v[{p}:{p+1}], v[{p}:{p+1}]')
            for p, t in zip(prs, T): k(f'v_pk_fma_f32 v[{t}:{t+1}], v[{t}:{t+1}], v[18:19], v[16:17]')
            for p, t in zip(prs, T): k(f'v_pk_mul_f32 v[{t}:{t+1}], v[{t}:{t+1}], v[{p}:{p+1}]')
            for t in range(24, 32): k(f'v_exp_f32 v{t}, v{t}')
            for p, t in zip(prs, T): k(f'v_pk_add_f32 v[{t}:{t+1}], v[{t}:{t+1}], v[4:5]')
            for t in range(24, 32): k(f'v_rcp_f32 v{t}, v{t}')
            for p, t in zip(prs, T): k(f'v_pk_mul_f32 v[{p}:{p+1}], v[{p}:{p+1}], v[{t}:{t+1}]')
        for sp in range(2):
            t = 32 + 8*(tt & 1) + 4*sp
            for j in range(4):
                r = 2*sp + (j >> 1); f = 2*(j & 1)
                k(f'v_cvt_pk_bf16_f32 v{t+j}, v{A(tt,f,r)}, v{A(tt,f+1,r)}')
            if len(q) >= 62: wait(q[0])
            issue('st', [f'buffer_store_dwordx4 {R("v", t)}, v22, s[72:75], s43 offen offset:{sp*1024} sc1'])
        if tt < 3: k(f's_add_u32 s43, s43, {56*1024}')
    k.stamp(SV)
    publish(32*128)
    k.stamp(SV)
    D = 7
    def gload(j): return [f's_mov_b32 s43, {j*1024}'] + [f'buffer_load_dwordx4 {R("v", 128+(j%(D+1))*16+4*t)}, v{8+t}, s[72:75], s43 offen sc1' for t in range(4)]
    for j in range(3): issue(('g', j), gload(j))
    for i in range(64): k(f'v_mov_b32 v{ACC+i}, 0')
    nxt = 3
    for s in range(14):
        wait(('g', s))
        for _ in range(2):
            if nxt <= min(13, s + D): issue(('g', nxt), gload(nxt)); nxt += 1
        if s % 4 == 0: k.stamp(SV)
        k('\n'.join(mf(R('v', ACC+(t*4+f)*4), R('a', s*16+4*f), R('v', 128+(s%(D+1))*16+4*t)) for t in range(4) for f in range(4)))
    k.stamp(SV)
    reduce4()
    add_bf16(48); add_bf16(56)
    for j in range(8):
        r = j >> 1; f = 2*(j & 1)
        k(f'v_cvt_pk_bf16_f32 v{40+j}, v{A0(f,r)}, v{A0(f+1,r)}')
    k('buffer_store_dwordx4 v[40:43], v21, s[84:87], 0 offen\nbuffer_store_dwordx4 v[44:47], v21, s[84:87], 0 offen offset:16')
    k.stamp(SV, True)
    return k.text()
```

```python
from common import *

CODE1 = 51*1024
def ln_gemm(mode):
    qkv = mode == 'qkv'
    name = 'k1_qkv_kernel' if qkv else 'k4_ffn1_kernel'
    k = K(name)
    D = 6
    ACC, RAW, AF, VA = 64, 128, 224, 8
    RS = 2688 if qkv else 3584
    NW = 256
    k(f'''s_cmp_ge_u32 s2, {NW}
    s_cbranch_scc1 {name}_end
    s_load_dwordx2 s[4:5], s[0:1], {ARG['x']}
    s_load_dwordx2 s[6:7], s[0:1], {ARG['wqkv'] if qkv else ARG['w1']}
    s_load_dwordx2 s[8:9], s[0:1], {ARG['ws']}
    s_load_dwordx2 s[10:11], s[0:1], {ARG['b1']}
    v_lshrrev_b32 v1, 6, v0
    v_and_b32 v0, 63, v0
    s_and_b32 s35, s2, 7
    s_lshr_b32 s36, s2, 3
    v_readfirstlane_b32 s33, v1
    s_lshr_b32 s37, s36, 2
    s_and_b32 s32, s36, 3
    s_bitcmp1_b32 s35, 0
    s_cbranch_scc0 {name}_map
    s_cmp_ge_u32 s36, 24
    s_cbranch_scc1 {name}_end
    s_mul_i32 s37, s36, 43
    s_lshr_b32 s37, s37, 7
    s_mul_i32 s38, s37, 3
    s_sub_u32 s32, s36, s38
    s_add_u32 s32, s32, 4
{name}_map:
    s_lshr_b32 s31, s35, 1
    s_lshl_b32 s31, s31, 3
    s_add_u32 s31, s31, s37
    s_mul_i32 s92, s31, 7
    s_add_u32 s92, s92, s32
    s_mov_b32 s28, {hex(PERM_LO)}
    s_mov_b32 s29, {hex(PERM_HI)}''')
    k.code_prefetch(CODE1, 48)
    k.stamp(63)
    k(f'''s_mul_i32 s34, s32, {3 if qkv else 4}
    s_add_u32 s34, s34, s33
    v_and_b32 v2, 15, v0
    v_lshrrev_b32 v3, 4, v0''')
    if qkv:
        k('s_min_u32 s34, s34, 20')
    k(f'''s_lshl_b32 s39, s34, 7
    v_mul_u32_u24 v4, {RS*(8 if qkv else 16)}, v3
    v_lshl_add_u32 v4, v2, 3, v4
    v_add_u32 v{VA}, s39, v4''')
    for e in range(1, 8):
        k(f'v_add_u32 v{VA+e}, {RS*e}, v{VA}')
    if qkv:
        k(f'''v_lshrrev_b32 v5, 2, v0
        v_and_b32 v6, 3, v0
        s_lshl_b32 s40, s31, 2
        s_add_u32 s40, s40, s33
        s_mul_i32 s40, s40, {16*896}
        v_mul_u32_u24 v7, 896, v5
        v_lshl_add_u32 v7, v6, 4, v7
        v_add_u32 v7, s40, v7''')
    else:
        k(f'''s_lshl_b32 s40, s31, 2
        s_add_u32 s40, s40, s33
        s_mul_i32 s40, s40, {14*1024}
        v_lshlrev_b32 v7, 4, v0
        v_add_u32 v7, s40, v7''')
    k('s_waitcnt lgkmcnt(0)')
    k.stamp(63)
    if qkv:
        k.srd(12, 4, 2048*896)
        k.srd(16, 6, 448*2688)
        k.srd(20, 8, 0x600000, QF)
    else:
        k.srd(12, 8, 128*14*1024, HF)
        k.srd(16, 8, 392*4096, PW1)
        k.srd(20, 8, 128*56*1024, GF)
        k(f's_mul_i32 s44, s34, {14*4096}\nv_lshlrev_b32 v6, 4, v0')
        k.srd(24, 10, 1792*2)
        k(f'''s_lshl_b32 s41, s34, 7
        v_lshlrev_b32 v16, 5, v3
        v_add_u32 v16, s41, v16
        buffer_load_dwordx4 v[20:23], v16, s[24:27], 0 offen
        buffer_load_dwordx4 v[24:27], v16, s[24:27], 0 offen offset:16''')
    X = ACC
    for s in range(14):
        if qkv:
            k(f'buffer_load_dwordx4 v[{X+4*s}:{X+4*s+3}], v7, s[12:15], 0 offen offset:{64*s}')
        else:
            if s and s % 4 == 0: k('v_add_u32 v7, 4096, v7')
            k(f'buffer_load_dwordx4 v[{X+4*s}:{X+4*s+3}], v7, s[12:15], 0 offen offset:{1024*(s%4)}')
    def wrow(s):
        return (32*s if qkv else 64*(s >> 1) + 8*(s & 1))*RS
    def wload(s):
        if not qkv:
            return [f's_add_u32 s30, s44, {s*4096}'] + [f'buffer_load_dwordx4 a[{s*16+4*f}:{s*16+4*f+3}], v6, s[16:19], s30 offen offset:{f*1024}' for f in range(4)]
        o = [f's_mov_b32 s30, {wrow(s)}']
        for e in range(8):
            o.append(f'buffer_load_dwordx2 a[{s*16+2*e}:{s*16+2*e+1}], v{VA+e}, s[16:19], s30 offen')
        return o
    wq = []
    def w_issue(s): k('\n'.join(wload(s))); wq.append(s); assert len(wq) <= 7
    def w_wait(s):
        if s in wq:
            i = wq.index(s); k(f's_waitcnt vmcnt({8*(len(wq)-1-i)})'); del wq[:i+1]
    nbias = 0 if qkv else 2
    npre = 2 if qkv else 11
    if qkv: k(f's_cmp_eq_u32 s33, 3\ns_cbranch_scc1 {name}_now')
    for s in range(npre):
        k('\n'.join(wload(s)))
        if qkv: wq.append(s)
    k(f's_waitcnt vmcnt({(8 if qkv else 4)*npre})')
    if qkv:
        k(f's_branch {name}_ln')
        k.label(f'{name}_now')
        k('s_waitcnt vmcnt(0)')
        k.label(f'{name}_ln')
    k(f'''v_mov_b32 v28, 0x3f803f80
    v_mov_b32 v30, 0
    v_mov_b32 v31, 0
    v_mov_b32 v32, 0
    v_mov_b32 v33, 0''')
    k.stamp(63)
    def w_more(s, tag):
        k(f's_cmp_eq_u32 s33, 3\ns_cbranch_scc1 {name}_nw{tag}')
        if len(wq) >= 7: w_wait(wq[0])
        w_issue(s)
        k.label(f'{name}_nw{tag}')
    for i in range(56):
        if qkv and i in (0, 28): w_more(2 + i//28, f'd{i}')
        k(f'v_dot2c_f32_bf16 v{30+(i&1)}, v{X+i}, v28')
        k(f'v_dot2c_f32_bf16 v{32+(i&1)}, v{X+i}, v{X+i}')
    if not qkv:
        for s in range(11, 14): k('\n'.join(wload(s)))
    k('s_nop 2\nv_add_f32 v30, v30, v31\nv_add_f32 v32, v32, v33\ns_nop 1')
    if qkv:
        for p in ('[1,0,3,2]', '[2,3,0,1]'):
            k(f'''v_add_f32_dpp v30, v30, v30 quad_perm:{p} row_mask:0xf bank_mask:0xf
            v_add_f32_dpp v32, v32, v32 quad_perm:{p} row_mask:0xf bank_mask:0xf
            s_nop 1''')
    else:
        for sw in ('v_permlane16_swap_b32', 'v_permlane32_swap_b32'):
            k(f'''v_mov_b32 v31, v30
            v_mov_b32 v33, v32
            s_nop 1
            {sw} v31, v30
            {sw} v33, v32
            s_nop 1
            v_add_f32 v30, v30, v31
            v_add_f32 v32, v32, v33''')
    k(f'''v_mul_f32 v30, {hex(f2u(1/448))}, v30
    v_mul_f32 v32, {hex(f2u(1/448))}, v32
    v_fma_f32 v32, -v30, v30, v32
    v_max_f32 v32, 0, v32
    v_add_f32 v32, {hex(f2u(1e-5))}, v32
    v_rsq_f32 v34, v32
    s_nop 0
    v_mul_f32 v36, v30, v34
    v_sub_f32 v36, 0, v36
    v_mov_b32 v35, v34
    v_mov_b32 v37, v36''')
    if qkv:
        k(f'''v_lshlrev_b32 v38, 1, v6
        v_xor_b32 v38, v38, v5
        v_lshlrev_b32 v38, 4, v38
        v_lshl_add_u32 v38, v6, 8, v38''')
    else:
        k('v_lshlrev_b32 v38, 4, v0')
    k(f'''s_mul_i32 s41, s33, 14336
    v_add_u32 v38, s41, v38''')
    for s in range(14):
        for j in range(4):
            r = X + 4*s + j; t = 40 + 2*(j & 1)
            k(f'''v_lshlrev_b32 v{t}, 16, v{r}
            v_and_b32 v{t+1}, 0xffff0000, v{r}
            v_pk_fma_f32 v[{t}:{t+1}], v[{t}:{t+1}], v[34:35], v[36:37]
            v_cvt_pk_bf16_f32 v{r}, v{t}, v{t+1}''')
        k(f'ds_write_b128 v38, v[{X+4*s}:{X+4*s+3}] offset:{1024*s}')
        if qkv and s % 3 == 0: w_more(4 + s//3, f'n{s}')
    if qkv:
        k(f'''v_lshlrev_b32 v39, 1, v3
        v_xor_b32 v39, v39, v2
        v_lshlrev_b32 v39, 4, v39
        v_lshl_add_u32 v39, v3, 8, v39''')
    else:
        k('v_lshlrev_b32 v39, 4, v0')
    k.stamp(63)
    k('s_waitcnt lgkmcnt(0)\ns_barrier')
    k.stamp(63)
    if qkv:
        k(f's_cmp_eq_u32 s33, 3\ns_cbranch_scc1 {name}_pf')
    if qkv:
        for i in range(64): k(f'v_mov_b32 v{ACC+i}, 0')
    else:
        for j in range(8):
            r = j >> 1; f = 2*(j & 1)
            k(f'v_lshlrev_b32 v{ACC+f*4+r}, 16, v{20+j}\nv_and_b32 v{ACC+(f+1)*4+r}, 0xffff0000, v{20+j}')
        for tt in range(1, 4):
            for i in range(16): k(f'v_mov_b32 v{ACC+tt*16+i}, v{ACC+i}')
    BF = 128
    def bread(s):
        return [f'ds_read_b128 v[{BF+(s&1)*16+tt*4}:{BF+(s&1)*16+tt*4+3}], v39 offset:{tt*14336+s*1024}' for tt in range(4)]
    RW = 160
    def stage(s): return [f'v_accvgpr_read_b32 v{RW+i}, a{s*16+i}' for i in range(16)]
    wq0 = list(wq)
    def body(flip, tag):
        wq[:] = wq0
        k('\n'.join(bread(0)))
        w_wait(0)
        k('\n'.join(stage(0) + perm_ops(RW, AF, 28, 29)))
        for s in range(14):
            cur = s & 1
            if s < 13: w_wait(s+1)
            k('s_waitcnt lgkmcnt(0)')
            if s < 13: k('\n'.join(bread(s+1)))
            if s % 2 == 0: k.stamp(63)
            m = []
            for tt in range(4):
                for f in range(4):
                    a = f'v[{AF+cur*16+4*f}:{AF+cur*16+4*f+3}]'; b = f'v[{BF+cur*16+tt*4}:{BF+cur*16+tt*4+3}]'
                    c = f'v[{ACC+(tt*4+f)*4}:{ACC+(tt*4+f)*4+3}]'
                    m.append(f'v_mfma_f32_16x16x32_bf16 {c}, {b}, {a}, {c}' if flip else f'v_mfma_f32_16x16x32_bf16 {c}, {a}, {b}, {c}')
            fill = stage(s+1) + perm_ops(RW, AF + (1-cur)*16, 28, 29) if s < 13 else []
            k('\n'.join(interleave(m, fill)))
            if s + 9 <= 13:
                if len(wq) >= 7: w_wait(wq[0])
                w_issue(s + 9)
        k('s_nop 7')
        k.stamp(63)
    A = lambda tt, f, r: ACC + (tt*4+f)*4 + r
    if qkv:
        k(f's_cmp_ge_u32 s34, 14\ns_cbranch_scc1 {name}_v')
        body(False, 'qk')
        k(f'''s_cmp_ge_u32 s34, 7
        s_cselect_b32 s42, 7, 0
        s_cselect_b32 s43, {hex(KF)}, 0
        s_sub_u32 s42, s34, s42
        s_lshl_b32 s42, s42, 4
        s_lshl_b32 s44, s31, 12
        s_add_u32 s43, s43, s44
        v_lshl_add_u32 v16, v3, 2, s42''')
        for r in range(4):
            k(f'''v_add_u32 v17, {r}, v16
            v_mul_u32_u24 v18, 147, v17
            v_lshrrev_b32 v18, 10, v18
            v_mul_u32_u24 v19, 7, v18
            v_sub_u32 v19, v17, v19
            v_lshlrev_b32 v{20+r}, 17, v18
            v_lshrrev_b32 v17, 2, v19
            v_lshl_add_u32 v{20+r}, v17, 10, v{20+r}
            v_bfe_u32 v17, v19, 1, 1
            v_lshl_add_u32 v{20+r}, v17, 9, v{20+r}
            v_and_b32 v17, 1, v19
            v_lshl_add_u32 v{20+r}, v17, 3, v{20+r}
            v_lshl_add_u32 v{20+r}, v2, 4, v{20+r}''')
        sc = f2u(math.log2(math.e)/math.sqrt(28))
        k(f's_mov_b32 s45, {hex(sc)}\ns_cmp_ge_u32 s34, 7\ns_cbranch_scc1 {name}_nosc')
        for i in range(64): k(f'v_mul_f32 v{ACC+i}, s45, v{ACC+i}')
        k.label(f'{name}_nosc')
        n = 0
        for tt in range(4):
            for r in range(4):
                t = 24 + 2*(n % 8); n += 1
                k(f'''v_cvt_pk_bf16_f32 v{t}, v{A(tt,0,r)}, v{A(tt,1,r)}
                v_cvt_pk_bf16_f32 v{t+1}, v{A(tt,2,r)}, v{A(tt,3,r)}
                buffer_store_dwordx2 v[{t}:{t+1}], v{20+r}, s[20:23], s43 offen offset:{(tt>>1)*2048+(tt&1)*256}''')
        k.stamp(63, True)
        k('s_endpgm')
        k.label(f'{name}_v')
        body(True, 'v')
        k(f'''s_sub_u32 s42, s34, 14
        s_lshl_b32 s42, s42, 4
        s_lshl_b32 s43, s31, 12
        s_add_u32 s43, s43, {hex(VF)}
        v_add_u32 v17, s42, v2
        v_mul_u32_u24 v18, 147, v17
        v_lshrrev_b32 v18, 10, v18
        v_mul_u32_u24 v19, 7, v18
        v_sub_u32 v19, v17, v19
        v_lshlrev_b32 v20, 17, v18
        v_lshl_add_u32 v20, v19, 6, v20
        v_and_b32 v17, 1, v3
        v_lshl_add_u32 v20, v17, 9, v20
        v_lshrrev_b32 v17, 1, v3
        v_lshl_add_u32 v20, v17, 3, v20''')
        n = 0
        for tt in range(4):
            for f in range(4):
                t = 24 + 2*(n % 8); n += 1
                k(f'''v_cvt_pk_bf16_f32 v{t}, v{A(tt,f,0)}, v{A(tt,f,1)}
                v_cvt_pk_bf16_f32 v{t+1}, v{A(tt,f,2)}, v{A(tt,f,3)}
                buffer_store_dwordx2 v[{t}:{t+1}], v{20}, s[20:23], s43 offen offset:{f*16+(tt>>1)*2048+(tt&1)*1024}''')
    else:
        body(False, 'g')
        c0 = -2*math.log2(math.e)*math.sqrt(2/math.pi); c1 = c0*0.044715
        k(f'''v_mov_b32 v16, {hex(f2u(c0))}
        v_mov_b32 v17, v16
        v_mov_b32 v18, {hex(f2u(c1))}
        v_mov_b32 v19, v18
        v_mov_b32 v4, 1.0
        v_mov_b32 v5, 1.0
        s_lshl_b32 s40, s31, 2
        s_mul_i32 s40, s40, {56*1024}
        s_lshl_b32 s41, s34, 11
        s_add_u32 s43, s40, s41
        v_lshlrev_b32 v20, 4, v0''')
        for tt in range(4):
            b = ACC + tt*16
            for h in range(2):
                prs = [b + 8*h + 2*i for i in range(4)]
                T = [24 + 2*i for i in range(4)]
                for p, t in zip(prs, T): k(f'v_pk_mul_f32 v[{t}:{t+1}], v[{p}:{p+1}], v[{p}:{p+1}]')
                for p, t in zip(prs, T): k(f'v_pk_fma_f32 v[{t}:{t+1}], v[{t}:{t+1}], v[18:19], v[16:17]')
                for p, t in zip(prs, T): k(f'v_pk_mul_f32 v[{t}:{t+1}], v[{t}:{t+1}], v[{p}:{p+1}]')
                for t in range(24, 32): k(f'v_exp_f32 v{t}, v{t}')
                for p, t in zip(prs, T): k(f'v_pk_add_f32 v[{t}:{t+1}], v[{t}:{t+1}], v[4:5]')
                for t in range(24, 32): k(f'v_rcp_f32 v{t}, v{t}')
                for p, t in zip(prs, T): k(f'v_pk_mul_f32 v[{p}:{p+1}], v[{p}:{p+1}], v[{t}:{t+1}]')
            for sp in range(2):
                t = 32 + 8*(tt & 1) + 4*sp
                for j in range(4):
                    r = 2*sp + (j >> 1); f = 2*(j & 1)
                    k(f'v_cvt_pk_bf16_f32 v{t+j}, v{A(tt,f,r)}, v{A(tt,f+1,r)}')
                k(f'buffer_store_dwordx4 v[{t}:{t+3}], v20, s[20:23], s43 offen offset:{sp*1024}')
            if tt < 3: k(f's_add_u32 s43, s43, {56*1024}')
    k.stamp(63, True)
    k.label(f'{name}_end')
    k('s_endpgm')
    if qkv:
        k.label(f'{name}_pf')
        k(f'''s_load_dwordx2 s[4:5], s[0:1], {ARG['wo']}
        s_load_dwordx2 s[6:7], s[0:1], {ARG['w1']}
        s_load_dwordx2 s[10:11], s[0:1], {ARG['w2']}
        v_lshlrev_b32 v22, 4, v0
        s_waitcnt lgkmcnt(0)''')
        k.srd(20, 8, 0x1800000)
        k(f's_cmp_lg_u32 s92, 223\ns_cbranch_scc1 {name}_nz\nv_mov_b32 v24, 0\nv_mov_b32 v25, 0\nv_mov_b32 v26, 0\nv_mov_b32 v27, 0\ns_mov_b32 s45, 0x1700000')
        for i in range(12): k(f'buffer_store_dwordx4 v[24:27], v22, s[20:23], s45 offen\ns_add_u32 s45, s45, 1024')
        k.label(f'{name}_nz')
        for u in range(4):
            L = f'{name}_u{u}'
            k(f'''s_lshl_b32 s45, s92, 2
            s_add_u32 s45, s45, {u}
            s_cmp_ge_u32 s45, 882
            s_cbranch_scc1 {L}_done
            s_cmp_ge_u32 s45, 784
            s_cbranch_scc1 {L}_wo
            s_cmp_ge_u32 s45, 392
            s_cbranch_scc1 {L}_w2''')
            for tag, ptr, base, rs, rows, ns, dst, nat in (('w1', 6, 0, 3584, 448, 14, PW1, False), ('w2', 10, 392, 896, 1792, 56, PW2, False), ('wo', 4, 784, 896, 448, 14, PWO, True)):
                if tag != 'w1': k.label(f'{L}_{tag}')
                k.srd(16, ptr, rows*rs)
                k(f'''s_sub_u32 s46, s45, {base}
                s_mul_i32 s47, s46, {-(-65536//ns)}
                s_lshr_b32 s47, s47, 16
                s_mul_i32 s48, s47, {ns}
                s_sub_u32 s48, s46, s48
                s_lshl_b32 s49, s46, 12
                s_add_u32 s{50+u}, s49, {hex(dst)}
                s_lshl_b32 s47, s47, 7''')
                if nat: k(f's_mul_i32 s49, s48, {32*rs}')
                else: k(f's_lshr_b32 s49, s48, 1\ns_mul_i32 s49, s49, {64*rs}\ns_and_b32 s48, s48, 1\ns_mul_i32 s48, s48, {8*rs}\ns_add_u32 s49, s49, s48')
                k(f'''s_add_u32 s49, s49, s47
                v_mul_u32_u24 v4, {rs*(8 if nat else 16)}, v3
                v_lshl_add_u32 v4, v2, 3, v4''')
                for e in range(8):
                    k(f'buffer_load_dwordx2 v[{RAW+u*16+2*e}:{RAW+u*16+2*e+1}], v4, s[16:19], s49 offen')
                    if e < 7: k(f's_add_u32 s49, s49, {rs}')
                k(f's_branch {L}_done')
            k.label(f'{L}_done')
        k.stamp(63)
        for u in range(4):
            k(f's_lshl_b32 s45, s92, 2\ns_add_u32 s45, s45, {u}\ns_cmp_ge_u32 s45, 882\ns_cbranch_scc1 {name}_pfend')
            k(f's_waitcnt vmcnt({0 if u == 0 else 4})')
            k('\n'.join(perm_ops(RAW + u*16, ACC + u*16, 28, 29)))
            k('s_nop 1')
            for f in range(4):
                k(f'buffer_store_dwordx4 v[{ACC+u*16+4*f}:{ACC+u*16+4*f+3}], v22, s[20:23], s{50+u} offen offset:{f*1024}')
        k.label(f'{name}_pfend')
        k.stamp(63)
        k('s_waitcnt vmcnt(0)') if __import__('os').environ.get('STAMP') else None
        k.stamp(63, True)
        k('s_endpgm')
    return name, header(name) + '\n' + k.text(), desc(name, 256, 224), (256, 256, 57344)
```

```python
from common import *

import os
NWV = int(os.environ.get('NWV', 4))
NT = os.environ.get('NT', '')
TPW = 64//NWV
CODE2 = 29*1024
def attn():
    name = 'k2_attn_kernel'
    k = K(name)
    Q, O, S, P, KB, VB, M = 16, 48, 112, 144, 160, 192, 224
    k(f'''s_cmp_ge_u32 s2, 256
    s_cbranch_scc1 {name}_end
    s_load_dwordx2 s[8:9], s[0:1], {ARG['ws']}
    v_lshrrev_b32 v1, 6, v0
    v_mov_b32 v15, v0
    v_and_b32 v0, 63, v0
    s_and_b32 s35, s2, 7
    s_lshr_b32 s36, s2, 3
    v_readfirstlane_b32 s33, v1
    s_lshr_b32 s37, s36, 4
    s_lshl_b32 s31, s35, 1
    s_add_u32 s31, s31, s37
    s_and_b32 s32, s36, 15
    v_lshlrev_b32 v2, 4, v0
    s_lshl_b32 s38, s31, 17
    s_lshl_b32 s39, s32, 13
    s_add_u32 s39, s39, s38
    s_mul_i32 s40, s33, {TPW*2048}
    s_add_u32 s40, s40, s38
    s_mov_b32 s42, 0x0fffffff
    s_mov_b32 s43, 0x0fffffff
    v_cmp_gt_u32 vcc, 32, v0
    v_cndmask_b32 v3, 0, -1, vcc
    s_mov_b32 s47, 0
    s_waitcnt lgkmcnt(0)''')
    k.stamp(14)
    k.code_prefetch(CODE2, 236)
    k(f'''s_mul_i32 s37, s36, 37
    s_lshr_b32 s37, s37, 8
    s_mul_i32 s38, s37, 7
    s_sub_u32 s56, s36, s38
    s_lshl_b32 s56, s56, 2
    s_add_u32 s56, s56, s33
    s_mul_i32 s57, s56, {14*4096}''')
    k.srd(64, 8, 392*4096, PW1)
    k.srd(68, 8, 392*4096, PW2)
    k('s_lshl_b32 s58, s36, 2\ns_add_u32 s58, s58, s33\ns_mul_i32 s58, s58, 14336')
    k.srd(12, 8, 0x200000, QF)
    k.srd(16, 8, 0x200000, KF)
    k.srd(20, 8, 0x200000, VF)
    k.srd(24, 8, 128*14336, OF)
    for c in range(4):
        for m in range(2):
            if c == 2 and m == 0: k('s_add_u32 s39, s39, 4096')
            k(f'buffer_load_dwordx4 v[{Q+(c*2+m)*4}:{Q+(c*2+m)*4+3}], v2, s[12:15], s39 offen offset:{(c&1)*2048+m*1024}')
    for i in range(32): k(f'v_mov_b32 v{VB+i}, 0x3f803f80')
    def kv(buf, sreg):
        return [f'buffer_load_dwordx4 v[{KB+buf*8}:{KB+buf*8+3}], v2, s[16:19], {sreg} offen',
                f'buffer_load_dwordx4 v[{KB+buf*8+4}:{KB+buf*8+7}], v2, s[16:19], {sreg} offen offset:1024',
                's_mov_b64 exec, s[42:43]',
                f'buffer_load_dwordx4 v[{VB+buf*8}:{VB+buf*8+3}], v2, s[20:23], {sreg} offen',
                f'buffer_load_dwordx4 v[{VB+buf*8+4}:{VB+buf*8+7}], v2, s[20:23], {sreg} offen offset:1024',
                's_mov_b64 exec, -1']
    k('s_mov_b32 s41, s40')
    for j in range(3):
        k('\n'.join(kv(j, 's41')))
        k('s_add_u32 s41, s41, 2048')
    for i in range(64): k(f'v_mov_b32 v{O+i}, 0')
    for i in range(16): k(f'v_mov_b32 v{P+i}, 0')
    def kmask(buf): return [f'v_and_b32 v{KB+buf*8+6}, v3, v{KB+buf*8+6}', f'v_and_b32 v{KB+buf*8+7}, v3, v{KB+buf*8+7}']
    def qk(buf, c, sb):
        d = f'v[{S+sb*16}:{S+sb*16+15}]'
        return [f'v_mfma_f32_32x32x16_bf16 {d}, v[{KB+buf*8}:{KB+buf*8+3}], v[{Q+c*8}:{Q+c*8+3}], 0',
                f'v_mfma_f32_32x32x16_bf16 {d}, v[{KB+buf*8+4}:{KB+buf*8+7}], v[{Q+c*8+4}:{Q+c*8+7}], {d}']
    def pv(buf, c, pb):
        d = f'v[{O+c*16}:{O+c*16+15}]'
        return [f'v_mfma_f32_32x32x16_bf16 {d}, v[{VB+buf*8}:{VB+buf*8+3}], v[{P+pb*8}:{P+pb*8+3}], {d}',
                f'v_mfma_f32_32x32x16_bf16 {d}, v[{VB+buf*8+4}:{VB+buf*8+7}], v[{P+pb*8+4}:{P+pb*8+7}], {d}']
    k.stamp(14)
    k('s_waitcnt vmcnt(8)')
    k.stamp(14)
    for c in range(4):
        k(f'v_and_b32 v{Q+c*8+6}, v3, v{Q+c*8+6}\nv_and_b32 v{Q+c*8+7}, v3, v{Q+c*8+7}')
    k('\n'.join(kmask(0)))
    k('s_nop 1')
    k('\n'.join(qk(0, 0, 0)))
    k('s_nop 7\ns_nop 3')
    q = ['kv0']*4 + ['kv1']*4 + ['kv2']*4
    del q[:4]
    for j in range(TPW):
        jj = j % 4
        for c in range(4):
            sb = c & 1
            nb = (jj + (c == 3)) % 4
            pre = []
            if c == 3 and j < TPW-1:
                last = max(i for i, t in enumerate(q) if t == f'kv{j+1}')
                pre = [f's_waitcnt vmcnt({len(q)-1-last})'] + kmask(nb); del q[:last+1]
            a = qk(nb, (c+1) & 3, 1-sb)
            b = pv((jj - (c == 0)) % 4, (c-1) & 3, 1-sb)
            ex = [f'v_exp_f32 v{S+sb*16+i}, v{S+sb*16+i}' for i in range(16)]
            cv = [f'v_cvt_pk_bf16_f32 v{P+sb*8+i}, v{S+sb*16+2*i}, v{S+sb*16+2*i+1}' for i in range(8)]
            if j == TPW-1 and c == 3: a = ['s_nop 0', 's_nop 0']
            seq = pre + ex[0:2] + [a[0]] + ex[2:7] + [cv[0], cv[1], a[1]] + ex[7:11] + [cv[2], cv[3], cv[4], b[0]] + ex[11:16] + [cv[5], cv[6], b[1], cv[7]]
            if c == 1 and j + 3 < TPW:
                seq = seq[:3] + kv((jj+3) % 4, 's41') + ['s_add_u32 s41, s41, 2048'] + seq[3:]; q += [f'kv{j+3}']*4
            if c == 0 and j >= 2 and os.environ.get('PFW2'):
                w = [f'buffer_load_dwordx4 v[232:235], v2, s[68:71], s58 offen', 's_add_u32 s58, s58, 1024']
                seq = seq[:3] + w + seq[3:]; q += ['p']
            if c == 2 and j < 14:
                w = [f's_add_u32 s30, s57, {j*4096}'] + [f'buffer_load_dwordx4 a[{j*16+4*f}:{j*16+4*f+3}], v2, s[64:67], s30 offen offset:{f*1024}' + NT for f in range(4)]
                seq = seq[:3] + w + seq[3:]; q += ['w']*4
            k('\n'.join(seq))
    k('s_nop 1')
    k('\n'.join(pv(3, 3, 1)))
    k.stamp(14)
    k.label(f'{name}_comb')
    k(f'''v_lshrrev_b32 v4, 5, v0
    v_and_b32 v5, 31, v0
    v_lshlrev_b32 v4, 11, v4
    v_lshl_add_u32 v4, v5, 4, v4
    s_lshl_b32 s45, s33, 14
    v_add_u32 v4, s45, v4
    s_nop 7
    s_nop 7''')
    for c in range(4):
        for j in range(4):
            k(f'ds_write_b128 v4, v[{O+c*16+4*j}:{O+c*16+4*j+3}] offset:{j*4096+c*512}')
    k(f'''v_and_b32 v5, 127, v15
    v_lshlrev_b32 v6, 4, v5
    v_xor_b32 v7, 1024, v6
    v_add_u32 v12, 0x10000, v6
    v_add_u32 v13, 0x10000, v7
    s_waitcnt lgkmcnt(0)
    s_barrier''')
    k.stamp(14)
    NG = 8//(NWV//2)
    LS = S + 16
    for w in range(NWV):
        k(f'ds_read_b32 v{S+w}, v6 offset:{w*16384+7*2048}' if w < 4 else f'ds_read_b32 v{S+w}, v12 offset:{(w-4)*16384+7*2048}')
    for w in range(NWV):
        k(f'ds_read_b32 v{LS+w}, v7 offset:{w*16384+7*2048}' if w < 4 else f'ds_read_b32 v{LS+w}, v13 offset:{(w-4)*16384+7*2048}')
    k(f'''s_lshr_b32 s46, s33, 1
    s_lshl_b32 s45, s46, 11
    v_add_u32 v6, s45, v6
    v_add_u32 v12, s45, v12
    s_waitcnt lgkmcnt(0)''')
    for i in range(NG):
        for w in range(NWV):
            r = KB + (i*NWV+w)*4
            k(f'ds_read_b128 v[{r}:{r+3}], v{6 if w < 4 else 12} offset:{(w&3)*16384+i*(NWV//2)*2048}')
    for w in range(1, NWV): k(f'v_add_f32 v{S}, v{S}, v{S+w}\nv_add_f32 v{LS}, v{LS}, v{LS+w}')
    k(f'''v_mov_b32 v8, v{S}
    v_mov_b32 v{S}, v{LS}
    s_cmp_lg_u32 s47, 0
    s_cbranch_scc1 {name}_ok
    v_mov_b32 v9, {hex(f2u(2.0**-60))}
    v_mov_b32 v10, {hex(f2u(2.0**60))}
    v_cmp_ge_f32 s[48:49], v8, v9
    v_cmp_le_f32 s[50:51], v8, v10
    v_cmp_ge_f32 s[52:53], v{S}, v9
    v_cmp_le_f32 s[54:55], v{S}, v10
    s_and_b64 s[48:49], s[48:49], s[50:51]
    s_and_b64 s[52:53], s[52:53], s[54:55]
    s_and_b64 s[48:49], s[48:49], s[52:53]
    s_cmp_eq_u64 s[48:49], -1
    s_cbranch_scc0 {name}_slow''')
    k.label(f'{name}_ok')
    k(f'''v_rcp_f32 v8, v8
    v_lshrrev_b32 v9, 4, v5
    v_mul_u32_u24 v9, 14336, v9
    v_and_b32 v10, 15, v5
    v_lshl_add_u32 v9, v10, 4, v9
    s_mul_i32 s48, s32, {8*14336}
    s_mul_i32 s49, s31, 7
    s_add_u32 s49, s49, s46
    s_waitcnt lgkmcnt(0)''')
    for i in range(NG):
        if i == NG-1: k.stamp(14, True)
        if i == NG-1: k(f's_cmp_eq_u32 s46, {NWV//2-1}\ns_cbranch_scc1 {name}_pub')
        r = KB + i*NWV*4
        for w in range(1, NWV):
            k(f'v_pk_add_f32 v[{r}:{r+1}], v[{r}:{r+1}], v[{r+4*w}:{r+4*w+1}]\nv_pk_add_f32 v[{r+2}:{r+3}], v[{r+2}:{r+3}], v[{r+4*w+2}:{r+4*w+3}]')
        k(f'''v_mul_f32 v{r}, v8, v{r}
        v_mul_f32 v{r+1}, v8, v{r+1}
        v_mul_f32 v{r+2}, v8, v{r+2}
        v_mul_f32 v{r+3}, v8, v{r+3}
        v_cvt_pk_bf16_f32 v{r+4}, v{r}, v{r+1}
        v_cvt_pk_bf16_f32 v{r+5}, v{r+2}, v{r+3}
        s_lshr_b32 s50, s49, 3
        s_lshl_b32 s50, s50, 10
        s_bfe_u32 s51, s49, 0x20001
        s_lshl_b32 s51, s51, 8
        s_and_b32 s52, s49, 1
        s_lshl_b32 s52, s52, 3
        s_add_u32 s50, s50, s51
        s_add_u32 s50, s50, s52
        s_add_u32 s50, s50, s48
        buffer_store_dwordx2 v[{r+4}:{r+5}], v9, s[24:27], s50 offen sc1
        s_add_u32 s49, s49, {NWV//2}''')
    k(f's_branch {name}_pub')
    k.label(f'{name}_slow')
    k('s_waitcnt lgkmcnt(0) vmcnt(0)\ns_barrier\ns_mov_b32 s47, 1\ns_mov_b32 s41, s40\ns_mov_b32 s44, 0')
    for i in range(64): k(f'v_mov_b32 v{O+i}, 0')
    for i in range(32): k(f'v_mov_b32 v{VB+i}, 0x3f803f80')
    for c in range(4): k(f'v_mov_b32 v{M+c}, {hex(f2u(-3.0e38))}')
    k.label(f'{name}_sloop')
    k('\n'.join(kv(0, 's41')))
    k('s_add_u32 s41, s41, 2048\ns_waitcnt vmcnt(0)')
    k('\n'.join(kmask(0)))
    for c in range(4):
        k('s_nop 1')
        k('\n'.join(qk(0, c, 0)))
        k('s_nop 7\ns_nop 7')
        k(f'v_max_f32 v4, v{S}, v{S+1}')
        for i in range(2, 16, 2): k(f'v_max3_f32 v4, v4, v{S+i}, v{S+i+1}')
        k(f'''v_mov_b32 v5, v4
        s_nop 1
        v_permlane32_swap_b32 v5, v4
        s_nop 1
        v_max3_f32 v4, v4, v5, v{M+c}
        v_sub_f32 v5, v{M+c}, v4
        v_exp_f32 v5, v5
        v_mov_b32 v{M+c}, v4''')
        for i in range(16): k(f'v_mul_f32 v{O+c*16+i}, v5, v{O+c*16+i}')
        for i in range(16): k(f'v_sub_f32 v{S+i}, v{S+i}, v4')
        for i in range(16): k(f'v_exp_f32 v{S+i}, v{S+i}')
        k('s_nop 0')
        for i in range(8): k(f'v_cvt_pk_bf16_f32 v{P+i}, v{S+2*i}, v{S+2*i+1}')
        k('s_nop 1')
        k('\n'.join(pv(0, c, 0)))
        k('s_nop 7\ns_nop 7')
    k(f'''s_add_u32 s44, s44, 1
    s_cmp_lt_u32 s44, {TPW}
    s_cbranch_scc1 {name}_sloop
    v_and_b32 v5, 31, v0
    v_lshlrev_b32 v5, 2, v5
    v_add_u32 v5, {NWV*16384}, v5
    s_lshl_b32 s45, s33, 9
    v_add_u32 v4, s45, v5''')
    for c in range(4): k(f'ds_write_b32 v4, v{M+c} offset:{c*128}')
    return k, name, (Q, O, S, P, KB, VB, M)

def attn_full():
    k, name, (Q, O, S, P, KB, VB, M) = attn()
    k('s_waitcnt lgkmcnt(0)\ns_barrier')
    for c in range(4):
        for w in range(NWV):
            k(f'ds_read_b32 v{KB+c*NWV+w}, v5 offset:{w*512+c*128}')
    k('s_waitcnt lgkmcnt(0)\ns_barrier')
    for c in range(4):
        k(f'v_max_f32 v4, v{KB+c*NWV}, v{KB+c*NWV+1}')
        for w in range(2, NWV, 2): k(f'v_max3_f32 v4, v4, v{KB+c*NWV+w}, v{KB+c*NWV+w+1}')
        k(f'''v_sub_f32 v4, v{M+c}, v4
        v_exp_f32 v4, v4
        s_nop 0''')
        for i in range(16): k(f'v_mul_f32 v{O+c*16+i}, v4, v{O+c*16+i}')
    k(f's_branch {name}_comb')
    k.label(f'{name}_pub')
    from fused import fused, CNT
    k.srd(4, 8, 96*128, CNT)
    k(f'''s_waitcnt vmcnt(0)
    s_barrier
    s_cmp_lg_u32 s33, 0
    s_cbranch_scc1 {name}_pub2
    s_lshl_b32 s42, s32, 7
    s_add_u32 s42, s42, {64*128}
    v_mov_b32 v4, 1
    v_mov_b32 v5, 0
    s_mov_b64 exec, 1
    buffer_atomic_add v4, v5, s[4:7], s42 offen sc1
    s_mov_b64 exec, -1''')
    k.label(f'{name}_pub2')
    k(f's_cmp_ge_u32 s36, 28\ns_cbranch_scc1 {name}_end')
    mlp = fused(merged=True)
    txt = k.text() + '\n' + mlp + f'\n{name}_end:\n    s_endpgm'
    return name, header(name) + '\n' + txt, desc(name, 256, 224), (256, 64*NWV, NWV*16384 + 4096)
```

```python
import math
QF, KF, VF, OF, HF, GF = 0x0, 0x200000, 0x400000, 0x600000, 0x800000, 0xA00000
PWO, PW1, PW2 = 0x1200000, 0x1280000, 0x1500000
ARG = dict(x=0, wqkv=8, wo=16, w1=32, b1=40, w2=48, b2=56, out=64, dbg=72, ws=80)

def f2u(x):
    import struct
    return struct.unpack('<I', struct.pack('<f', x))[0]

class K:
    def __init__(s, name):
        s.name = name; s.L = []; s.nl = 0
    def __call__(s, t):
        for ln in t.split('\n'):
            ln = ln.strip()
            if ln: s.L.append('    ' + ln)
    def label(s, n): s.L.append(n + ':')
    def code_prefetch(s, nbytes, vt, tag=''):
        import os
        if os.environ.get('NOCP'): return
        s(f'''s_getpc_b64 s[94:95]
        s_lshr_b32 s93, s2, 3
        s_lshl_b32 s93, s93, 2
        s_add_u32 s93, s93, s33
        s_lshl_b32 s93, s93, 10
        s_cmp_ge_u32 s93, {nbytes}
        s_cbranch_scc1 {s.name}_ncp{tag}
        s_add_u32 s94, s94, s93
        s_addc_u32 s95, s95, 0
        v_lshlrev_b32 v{vt}, 4, v0
        v_mov_b32 v{vt+1}, s95
        v_add_co_u32 v{vt}, vcc, s94, v{vt}
        s_nop 1
        v_addc_co_u32 v{vt+1}, vcc, 0, v{vt+1}, vcc
        global_load_dwordx4 v[{vt+2}:{vt+5}], v[{vt}:{vt+1}], off''')
        s.label(f'{s.name}_ncp{tag}')
    def mark(s): return len(s.L)
    def host(s, start, groups, end=None):
        end = len(s.L) if end is None else end
        body = s.L[start:end]; ins = []
        for g in groups:
            pend = []
            for i in g:
                pend.append('    ' + i)
                if i.startswith('buffer_'): ins.append(pend); pend = []
        out = []; n = len(body); m = len(ins); j = 0
        for i, ln in enumerate(body):
            while j < m and j*n <= i*m:
                out += ins[j]; j += 1
            out.append(ln)
        for g in ins[j:]: out += g
        s.L[start:end] = out
    def stamp(s, vreg, final=False):
        import os
        if not os.environ.get('STAMP'): return
        i = s.nl; s.nl += 1
        s(f'{os.environ.get("STAMPI", "s_memtime")} s[90:91]\ns_waitcnt lgkmcnt(0)\nv_writelane_b32 v{vreg}, s90, {i}')
        if final:
            wg = os.environ.get('STAMP')
            s(f'''s_cmp_lg_u32 s2, {wg}
            s_cbranch_scc1 {s.name}_ns{i}
            s_cmp_lg_u32 s33, {os.environ.get('STAMPW', 0)}
            s_cbranch_scc1 {s.name}_ns{i}
            s_load_dwordx2 s[88:89], s[0:1], 72
            v_mbcnt_lo_u32_b32 v0, -1, 0
            v_mbcnt_hi_u32_b32 v0, -1, v0
            v_lshlrev_b32 v0, 2, v0
            s_waitcnt lgkmcnt(0)
            global_store_dword v0, v{vreg}, s[88:89]''')
            s.label(f'{s.name}_ns{i}')
    def text(s): return '\n'.join(s.L)
    def srd(s, r, arg_s, nbytes, off=0):
        if off:
            s(f's_add_u32 s{r}, s{arg_s}, {hex(off)}')
            s(f's_addc_u32 s{r+1}, s{arg_s+1}, 0')
        else:
            s(f's_mov_b32 s{r}, s{arg_s}')
            s(f's_mov_b32 s{r+1}, s{arg_s+1}')
        s(f's_mov_b32 s{r+2}, {hex(nbytes)}')
        s(f's_mov_b32 s{r+3}, 0x00020000')

def vr(b, n=1, p='v'):
    return f'{p}{b}' if n == 1 else f'{p}[{b}:{b+n-1}]'

def header(name):
    return f'.globl {name}\n.p2align 8\n.type {name},@function\n{name}:'

def desc(name, vgpr, agpr, sgpr=96):
    acc = (vgpr + 3)//4*4
    nfv = acc + agpr if agpr else vgpr
    return f'''.p2align 6
.amdhsa_kernel {name}
  .amdhsa_next_free_vgpr {nfv}
  .amdhsa_next_free_sgpr {sgpr}
  .amdhsa_accum_offset {acc}
  .amdhsa_group_segment_fixed_size 0
  .amdhsa_kernarg_size 88
  .amdhsa_user_sgpr_count 2
  .amdhsa_user_sgpr_kernarg_segment_ptr 1
  .amdhsa_system_sgpr_workgroup_id_x 1
.end_amdhsa_kernel'''

PERM_LO, PERM_HI = 0x05040100, 0x07060302

def interleave(main, fill, per=None):
    out = []; n = len(main); m = len(fill); j = 0
    for i, a in enumerate(main):
        out.append(a)
        tgt = (i+1)*m//n if per is None else min(m, (i+1)*per)
        while j < tgt:
            out.append(fill[j]); j += 1
    out += fill[j:]
    return out

def perm_ops(raw, af, slo, shi):
    o = []
    for f in range(4):
        for j in range(4):
            a = raw + (2*j)*2 + (f >> 1); b = raw + (2*j+1)*2 + (f >> 1)
            o.append(f'v_perm_b32 v{af+4*f+j}, v{b}, v{a}, s{shi if f & 1 else slo}')
    return o
```

```python
from common import *
import os

NWV = int(os.environ.get('NWV', 4))
NT = os.environ.get('NT', '')
TPW = 64//NWV
CODE2 = 29*1024
CODE3 = int(os.environ.get('CODE3', 17))*1024
def attn():
    name = 'k2_attn_kernel'
    k = K(name)
    Q, O, S, P, KB, VB, M = 16, 48, 112, 144, 160, 192, 224
    k(f'''s_cmp_ge_u32 s2, 256
    s_cbranch_scc1 {name}_end
    s_load_dwordx2 s[8:9], s[0:1], {ARG['ws']}
    v_lshrrev_b32 v1, 6, v0
    v_mov_b32 v15, v0
    v_and_b32 v0, 63, v0
    s_and_b32 s35, s2, 7
    s_lshr_b32 s36, s2, 3
    v_readfirstlane_b32 s33, v1
    s_lshr_b32 s37, s36, 4
    s_lshl_b32 s31, s35, 1
    s_add_u32 s31, s31, s37
    s_and_b32 s32, s36, 15
    v_lshlrev_b32 v2, 4, v0
    s_lshl_b32 s38, s31, 17
    s_lshl_b32 s39, s32, 13
    s_add_u32 s39, s39, s38
    s_mul_i32 s40, s33, {TPW*2048}
    s_add_u32 s40, s40, s38
    s_mov_b32 s42, 0x0fffffff
    s_mov_b32 s43, 0x0fffffff
    v_cmp_gt_u32 vcc, 32, v0
    v_cndmask_b32 v3, 0, -1, vcc
    s_mov_b32 s47, 0
    s_waitcnt lgkmcnt(0)''')
    k.stamp(14)
    k.code_prefetch(CODE2, 236)
    k(f'''s_mul_i32 s37, s36, 37
    s_lshr_b32 s37, s37, 8
    s_mul_i32 s38, s37, 7
    s_sub_u32 s56, s36, s38
    s_lshl_b32 s56, s56, 2
    s_add_u32 s56, s56, s33
    s_mul_i32 s57, s56, {14*4096}''')
    k.srd(64, 8, 392*4096, PW1)
    k.srd(68, 8, 392*4096, PW2)
    k('s_lshl_b32 s58, s36, 2\ns_add_u32 s58, s58, s33\ns_mul_i32 s58, s58, 14336')
    k.srd(12, 8, 0x200000, QF)
    k.srd(16, 8, 0x200000, KF)
    k.srd(20, 8, 0x200000, VF)
    k.srd(24, 8, 128*14336, OF)
    for c in range(4):
        for m in range(2):
            if c == 2 and m == 0: k('s_add_u32 s39, s39, 4096')
            k(f'buffer_load_dwordx4 v[{Q+(c*2+m)*4}:{Q+(c*2+m)*4+3}], v2, s[12:15], s39 offen offset:{(c&1)*2048+m*1024}')
    for i in range(32): k(f'v_mov_b32 v{VB+i}, 0x3f803f80')
    def kv(buf, sreg):
        return [f'buffer_load_dwordx4 v[{KB+buf*8}:{KB+buf*8+3}], v2, s[16:19], {sreg} offen',
                f'buffer_load_dwordx4 v[{KB+buf*8+4}:{KB+buf*8+7}], v2, s[16:19], {sreg} offen offset:1024',
                's_mov_b64 exec, s[42:43]',
                f'buffer_load_dwordx4 v[{VB+buf*8}:{VB+buf*8+3}], v2, s[20:23], {sreg} offen',
                f'buffer_load_dwordx4 v[{VB+buf*8+4}:{VB+buf*8+7}], v2, s[20:23], {sreg} offen offset:1024',
                's_mov_b64 exec, -1']
    k('s_mov_b32 s41, s40')
    for j in range(3):
        k('\n'.join(kv(j, 's41')))
        k('s_add_u32 s41, s41, 2048')
    for i in range(64): k(f'v_mov_b32 v{O+i}, 0')
    for i in range(16): k(f'v_mov_b32 v{P+i}, 0')
    def kmask(buf): return [f'v_and_b32 v{KB+buf*8+6}, v3, v{KB+buf*8+6}', f'v_and_b32 v{KB+buf*8+7}, v3, v{KB+buf*8+7}']
    def qk(buf, c, sb):
        d = f'v[{S+sb*16}:{S+sb*16+15}]'
        return [f'v_mfma_f32_32x32x16_bf16 {d}, v[{KB+buf*8}:{KB+buf*8+3}], v[{Q+c*8}:{Q+c*8+3}], 0',
                f'v_mfma_f32_32x32x16_bf16 {d}, v[{KB+buf*8+4}:{KB+buf*8+7}], v[{Q+c*8+4}:{Q+c*8+7}], {d}']
    def pv(buf, c, pb):
        d = f'v[{O+c*16}:{O+c*16+15}]'
        return [f'v_mfma_f32_32x32x16_bf16 {d}, v[{VB+buf*8}:{VB+buf*8+3}], v[{P+pb*8}:{P+pb*8+3}], {d}',
                f'v_mfma_f32_32x32x16_bf16 {d}, v[{VB+buf*8+4}:{VB+buf*8+7}], v[{P+pb*8+4}:{P+pb*8+7}], {d}']
    k.stamp(14)
    k('s_waitcnt vmcnt(8)')
    k.stamp(14)
    for c in range(4):
        k(f'v_and_b32 v{Q+c*8+6}, v3, v{Q+c*8+6}\nv_and_b32 v{Q+c*8+7}, v3, v{Q+c*8+7}')
    k('\n'.join(kmask(0)))
    k('s_nop 1')
    k('\n'.join(qk(0, 0, 0)))
    k('s_nop 7\ns_nop 3')
    q = ['kv0']*4 + ['kv1']*4 + ['kv2']*4
    del q[:4]
    for j in range(TPW):
        jj = j % 4
        for c in range(4):
            sb = c & 1
            nb = (jj + (c == 3)) % 4
            pre = []
            if c == 3 and j < TPW-1:
                last = max(i for i, t in enumerate(q) if t == f'kv{j+1}')
                pre = [f's_waitcnt vmcnt({len(q)-1-last})'] + kmask(nb); del q[:last+1]
            a = qk(nb, (c+1) & 3, 1-sb)
            b = pv((jj - (c == 0)) % 4, (c-1) & 3, 1-sb)
            ex = [f'v_exp_f32 v{S+sb*16+i}, v{S+sb*16+i}' for i in range(16)]
            cv = [f'v_cvt_pk_bf16_f32 v{P+sb*8+i}, v{S+sb*16+2*i}, v{S+sb*16+2*i+1}' for i in range(8)]
            if j == TPW-1 and c == 3: a = ['s_nop 0', 's_nop 0']
            seq = pre + ex[0:2] + [a[0]] + ex[2:7] + [cv[0], cv[1], a[1]] + ex[7:11] + [cv[2], cv[3], cv[4], b[0]] + ex[11:16] + [cv[5], cv[6], b[1], cv[7]]
            if c == 1 and j + 3 < TPW:
                seq = seq[:3] + kv((jj+3) % 4, 's41') + ['s_add_u32 s41, s41, 2048'] + seq[3:]; q += [f'kv{j+3}']*4
            if c == 0 and j >= 2 and os.environ.get('PFW2'):
                w = [f'buffer_load_dwordx4 v[232:235], v2, s[68:71], s58 offen', 's_add_u32 s58, s58, 1024']
                seq = seq[:3] + w + seq[3:]; q += ['p']
            if c == 2 and j < 14:
                w = [f's_add_u32 s30, s57, {j*4096}'] + [f'buffer_load_dwordx4 a[{j*16+4*f}:{j*16+4*f+3}], v2, s[64:67], s30 offen offset:{f*1024}' + NT for f in range(4)]
                seq = seq[:3] + w + seq[3:]; q += ['w']*4
            k('\n'.join(seq))
    k('s_nop 1')
    k('\n'.join(pv(3, 3, 1)))
    k.stamp(14)
    k.label(f'{name}_comb')
    k(f'''v_lshrrev_b32 v4, 5, v0
    v_and_b32 v5, 31, v0
    v_lshlrev_b32 v4, 11, v4
    v_lshl_add_u32 v4, v5, 4, v4
    s_lshl_b32 s45, s33, 14
    v_add_u32 v4, s45, v4
    s_nop 7
    s_nop 7''')
    for c in range(4):
        for j in range(4):
            k(f'ds_write_b128 v4, v[{O+c*16+4*j}:{O+c*16+4*j+3}] offset:{j*4096+c*512}')
    k(f'''v_and_b32 v5, 127, v15
    v_lshlrev_b32 v6, 4, v5
    v_xor_b32 v7, 1024, v6
    v_add_u32 v12, 0x10000, v6
    v_add_u32 v13, 0x10000, v7
    s_waitcnt lgkmcnt(0)
    s_barrier''')
    k.stamp(14)
    NG = 8//(NWV//2)
    LS = S + 16
    for w in range(NWV):
        k(f'ds_read_b32 v{S+w}, v6 offset:{w*16384+7*2048}' if w < 4 else f'ds_read_b32 v{S+w}, v12 offset:{(w-4)*16384+7*2048}')
    for w in range(NWV):
        k(f'ds_read_b32 v{LS+w}, v7 offset:{w*16384+7*2048}' if w < 4 else f'ds_read_b32 v{LS+w}, v13 offset:{(w-4)*16384+7*2048}')
    k(f'''s_lshr_b32 s46, s33, 1
    s_lshl_b32 s45, s46, 11
    v_add_u32 v6, s45, v6
    v_add_u32 v12, s45, v12
    s_waitcnt lgkmcnt(0)''')
    for i in range(NG):
        for w in range(NWV):
            r = KB + (i*NWV+w)*4
            k(f'ds_read_b128 v[{r}:{r+3}], v{6 if w < 4 else 12} offset:{(w&3)*16384+i*(NWV//2)*2048}')
    for w in range(1, NWV): k(f'v_add_f32 v{S}, v{S}, v{S+w}\nv_add_f32 v{LS}, v{LS}, v{LS+w}')
    k(f'''v_mov_b32 v8, v{S}
    v_mov_b32 v{S}, v{LS}
    s_cmp_lg_u32 s47, 0
    s_cbranch_scc1 {name}_ok
    v_mov_b32 v9, {hex(f2u(2.0**-60))}
    v_mov_b32 v10, {hex(f2u(2.0**60))}
    v_cmp_ge_f32 s[48:49], v8, v9
    v_cmp_le_f32 s[50:51], v8, v10
    v_cmp_ge_f32 s[52:53], v{S}, v9
    v_cmp_le_f32 s[54:55], v{S}, v10
    s_and_b64 s[48:49], s[48:49], s[50:51]
    s_and_b64 s[52:53], s[52:53], s[54:55]
    s_and_b64 s[48:49], s[48:49], s[52:53]
    s_cmp_eq_u64 s[48:49], -1
    s_cbranch_scc0 {name}_slow''')
    k.label(f'{name}_ok')
    k(f'''v_rcp_f32 v8, v8
    v_lshrrev_b32 v9, 4, v5
    v_mul_u32_u24 v9, 14336, v9
    v_and_b32 v10, 15, v5
    v_lshl_add_u32 v9, v10, 4, v9
    s_mul_i32 s48, s32, {8*14336}
    s_mul_i32 s49, s31, 7
    s_add_u32 s49, s49, s46
    s_waitcnt lgkmcnt(0)''')
    for i in range(NG):
        if i == NG-1: k.stamp(14, True)
        if i == NG-1: k(f's_cmp_eq_u32 s46, {NWV//2-1}\ns_cbranch_scc1 {name}_pub')
        r = KB + i*NWV*4
        for w in range(1, NWV):
            k(f'v_pk_add_f32 v[{r}:{r+1}], v[{r}:{r+1}], v[{r+4*w}:{r+4*w+1}]\nv_pk_add_f32 v[{r+2}:{r+3}], v[{r+2}:{r+3}], v[{r+4*w+2}:{r+4*w+3}]')
        k(f'''v_mul_f32 v{r}, v8, v{r}
        v_mul_f32 v{r+1}, v8, v{r+1}
        v_mul_f32 v{r+2}, v8, v{r+2}
        v_mul_f32 v{r+3}, v8, v{r+3}
        v_cvt_pk_bf16_f32 v{r+4}, v{r}, v{r+1}
        v_cvt_pk_bf16_f32 v{r+5}, v{r+2}, v{r+3}
        s_lshr_b32 s50, s49, 3
        s_lshl_b32 s50, s50, 10
        s_bfe_u32 s51, s49, 0x20001
        s_lshl_b32 s51, s51, 8
        s_and_b32 s52, s49, 1
        s_lshl_b32 s52, s52, 3
        s_add_u32 s50, s50, s51
        s_add_u32 s50, s50, s52
        s_add_u32 s50, s50, s48
        buffer_store_dwordx2 v[{r+4}:{r+5}], v9, s[24:27], s50 offen sc1
        s_add_u32 s49, s49, {NWV//2}''')
    k(f's_branch {name}_pub')
    k.label(f'{name}_slow')
    k('s_waitcnt lgkmcnt(0) vmcnt(0)\ns_barrier\ns_mov_b32 s47, 1\ns_mov_b32 s41, s40\ns_mov_b32 s44, 0')
    for i in range(64): k(f'v_mov_b32 v{O+i}, 0')
    for i in range(32): k(f'v_mov_b32 v{VB+i}, 0x3f803f80')
    for c in range(4): k(f'v_mov_b32 v{M+c}, {hex(f2u(-3.0e38))}')
    k.label(f'{name}_sloop')
    k('\n'.join(kv(0, 's41')))
    k('s_add_u32 s41, s41, 2048\ns_waitcnt vmcnt(0)')
    k('\n'.join(kmask(0)))
    for c in range(4):
        k('s_nop 1')
        k('\n'.join(qk(0, c, 0)))
        k('s_nop 7\ns_nop 7')
        k(f'v_max_f32 v4, v{S}, v{S+1}')
        for i in range(2, 16, 2): k(f'v_max3_f32 v4, v4, v{S+i}, v{S+i+1}')
        k(f'''v_mov_b32 v5, v4
        s_nop 1
        v_permlane32_swap_b32 v5, v4
        s_nop 1
        v_max3_f32 v4, v4, v5, v{M+c}
        v_sub_f32 v5, v{M+c}, v4
        v_exp_f32 v5, v5
        v_mov_b32 v{M+c}, v4''')
        for i in range(16): k(f'v_mul_f32 v{O+c*16+i}, v5, v{O+c*16+i}')
        for i in range(16): k(f'v_sub_f32 v{S+i}, v{S+i}, v4')
        for i in range(16): k(f'v_exp_f32 v{S+i}, v{S+i}')
        k('s_nop 0')
        for i in range(8): k(f'v_cvt_pk_bf16_f32 v{P+i}, v{S+2*i}, v{S+2*i+1}')
        k('s_nop 1')
        k('\n'.join(pv(0, c, 0)))
        k('s_nop 7\ns_nop 7')
    k(f'''s_add_u32 s44, s44, 1
    s_cmp_lt_u32 s44, {TPW}
    s_cbranch_scc1 {name}_sloop
    v_and_b32 v5, 31, v0
    v_lshlrev_b32 v5, 2, v5
    v_add_u32 v5, {NWV*16384}, v5
    s_lshl_b32 s45, s33, 9
    v_add_u32 v4, s45, v5''')
    for c in range(4): k(f'ds_write_b32 v4, v{M+c} offset:{c*128}')
    return k, name, (Q, O, S, P, KB, VB, M)

def attn_full():
    k, name, (Q, O, S, P, KB, VB, M) = attn()
    k('s_waitcnt lgkmcnt(0)\ns_barrier')
    for c in range(4):
        for w in range(NWV):
            k(f'ds_read_b32 v{KB+c*NWV+w}, v5 offset:{w*512+c*128}')
    k('s_waitcnt lgkmcnt(0)\ns_barrier')
    for c in range(4):
        k(f'v_max_f32 v4, v{KB+c*NWV}, v{KB+c*NWV+1}')
        for w in range(2, NWV, 2): k(f'v_max3_f32 v4, v4, v{KB+c*NWV+w}, v{KB+c*NWV+w+1}')
        k(f'''v_sub_f32 v4, v{M+c}, v4
        v_exp_f32 v4, v4
        s_nop 0''')
        for i in range(16): k(f'v_mul_f32 v{O+c*16+i}, v4, v{O+c*16+i}')
    k(f's_branch {name}_comb')
    k.label(f'{name}_pub')
    from fused import fused, CNT
    k.srd(4, 8, 96*128, CNT)
    k(f'''s_waitcnt vmcnt(0)
    s_barrier
    s_cmp_lg_u32 s33, 0
    s_cbranch_scc1 {name}_pub2
    s_lshl_b32 s42, s32, 7
    s_add_u32 s42, s42, {64*128}
    v_mov_b32 v4, 1
    v_mov_b32 v5, 0
    s_mov_b64 exec, 1
    buffer_atomic_add v4, v5, s[4:7], s42 offen sc1
    s_mov_b64 exec, -1''')
    k.label(f'{name}_pub2')
    k(f's_cmp_ge_u32 s36, 28\ns_cbranch_scc1 {name}_end')
    mlp = fused(merged=True)
    txt = k.text() + '\n' + mlp + f'\n{name}_end:\n    s_endpgm'
    return name, header(name) + '\n' + txt, desc(name, 256, 224), (256, 64*NWV, NWV*16384 + 4096)
```

```python
from common import *

CODE1 = 51*1024
def ln_gemm(mode):
    qkv = mode == 'qkv'
    name = 'k1_qkv_kernel' if qkv else 'k4_ffn1_kernel'
    k = K(name)
    D = 6
    ACC, RAW, AF, VA = 64, 128, 224, 8
    RS = 2688 if qkv else 3584
    NW = 256
    import os
    MAP0 = ''
    if os.environ.get('MAPOLD'):
        MAP0 = f'''s_cmp_ge_u32 s36, 28
    s_cbranch_scc1 {name}_end
    s_mul_i32 s37, s36, 37
    s_lshr_b32 s37, s37, 8
    s_mul_i32 s38, s37, 7
    s_sub_u32 s32, s36, s38
    s_lshl_b32 s31, s35, 2
    s_add_u32 s31, s31, s37
    s_mul_i32 s92, s31, 7
    s_add_u32 s92, s92, s32
    s_branch {name}_mapped'''
    k(f'''s_cmp_ge_u32 s2, {NW}
    s_cbranch_scc1 {name}_end
    s_load_dwordx2 s[4:5], s[0:1], {ARG['x']}
    s_load_dwordx2 s[6:7], s[0:1], {ARG['wqkv'] if qkv else ARG['w1']}
    s_load_dwordx2 s[8:9], s[0:1], {ARG['ws']}
    s_load_dwordx2 s[10:11], s[0:1], {ARG['b1']}
    v_lshrrev_b32 v1, 6, v0
    v_and_b32 v0, 63, v0
    s_and_b32 s35, s2, 7
    s_lshr_b32 s36, s2, 3
    v_readfirstlane_b32 s33, v1
{MAP0}
    s_lshr_b32 s37, s36, 2
    s_and_b32 s32, s36, 3
    s_bitcmp1_b32 s35, 0
    s_cbranch_scc0 {name}_map
    s_cmp_ge_u32 s36, 24
    s_cbranch_scc1 {name}_end
    s_mul_i32 s37, s36, 43
    s_lshr_b32 s37, s37, 7
    s_mul_i32 s38, s37, 3
    s_sub_u32 s32, s36, s38
    s_add_u32 s32, s32, 4
{name}_map:
    s_lshr_b32 s31, s35, 1
    s_lshl_b32 s31, s31, 3
    s_add_u32 s31, s31, s37
    s_mul_i32 s92, s31, 7
    s_add_u32 s92, s92, s32
{name}_mapped:
    s_mov_b32 s28, {hex(PERM_LO)}
    s_mov_b32 s29, {hex(PERM_HI)}''')
    k.code_prefetch(CODE1, 48)
    k.stamp(63)
    k(f'''s_mul_i32 s34, s32, {3 if qkv else 4}
    s_add_u32 s34, s34, s33
    v_and_b32 v2, 15, v0
    v_lshrrev_b32 v3, 4, v0''')
    if qkv:
        k('s_min_u32 s34, s34, 20')
    k(f'''s_lshl_b32 s39, s34, 7
    v_mul_u32_u24 v4, {RS*(8 if qkv else 16)}, v3
    v_lshl_add_u32 v4, v2, 3, v4
    v_add_u32 v{VA}, s39, v4''')
    for e in range(1, 8):
        k(f'v_add_u32 v{VA+e}, {RS*e}, v{VA}')
    if qkv:
        k(f'''v_lshrrev_b32 v5, 2, v0
        v_and_b32 v6, 3, v0
        s_lshl_b32 s40, s31, 2
        s_add_u32 s40, s40, s33
        s_mul_i32 s40, s40, {16*896}
        v_mul_u32_u24 v7, 896, v5
        v_lshl_add_u32 v7, v6, 4, v7
        v_add_u32 v7, s40, v7''')
    else:
        k(f'''s_lshl_b32 s40, s31, 2
        s_add_u32 s40, s40, s33
        s_mul_i32 s40, s40, {14*1024}
        v_lshlrev_b32 v7, 4, v0
        v_add_u32 v7, s40, v7''')
    k('s_waitcnt lgkmcnt(0)')
    k.stamp(63)
    if qkv:
        k.srd(12, 4, 2048*896)
        k.srd(16, 6, 448*2688)
        k.srd(20, 8, 0x600000, QF)
    else:
        k.srd(12, 8, 128*14*1024, HF)
        k.srd(16, 8, 392*4096, PW1)
        k.srd(20, 8, 128*56*1024, GF)
        k(f's_mul_i32 s44, s34, {14*4096}\nv_lshlrev_b32 v6, 4, v0')
        k.srd(24, 10, 1792*2)
        k(f'''s_lshl_b32 s41, s34, 7
        v_lshlrev_b32 v16, 5, v3
        v_add_u32 v16, s41, v16
        buffer_load_dwordx4 v[20:23], v16, s[24:27], 0 offen
        buffer_load_dwordx4 v[24:27], v16, s[24:27], 0 offen offset:16''')
    X = ACC
    for s in range(14):
        if qkv:
            k(f'buffer_load_dwordx4 v[{X+4*s}:{X+4*s+3}], v7, s[12:15], 0 offen offset:{64*s}')
        else:
            if s and s % 4 == 0: k('v_add_u32 v7, 4096, v7')
            k(f'buffer_load_dwordx4 v[{X+4*s}:{X+4*s+3}], v7, s[12:15], 0 offen offset:{1024*(s%4)}')
    def wrow(s):
        return (32*s if qkv else 64*(s >> 1) + 8*(s & 1))*RS
    def wload(s):
        if not qkv:
            return [f's_add_u32 s30, s44, {s*4096}'] + [f'buffer_load_dwordx4 a[{s*16+4*f}:{s*16+4*f+3}], v6, s[16:19], s30 offen offset:{f*1024}' for f in range(4)]
        o = [f's_mov_b32 s30, {wrow(s)}']
        for e in range(8):
            o.append(f'buffer_load_dwordx2 a[{s*16+2*e}:{s*16+2*e+1}], v{VA+e}, s[16:19], s30 offen')
        return o
    wq = []
    def w_issue(s): k('\n'.join(wload(s))); wq.append(s); assert len(wq) <= 7
    def w_wait(s):
        if s in wq:
            i = wq.index(s); k(f's_waitcnt vmcnt({8*(len(wq)-1-i)})'); del wq[:i+1]
    nbias = 0 if qkv else 2
    npre = 2 if qkv else 11
    if qkv: k(f's_cmp_eq_u32 s33, 3\ns_cbranch_scc1 {name}_now')
    for s in range(npre):
        k('\n'.join(wload(s)))
        if qkv: wq.append(s)
    k(f's_waitcnt vmcnt({(8 if qkv else 4)*npre})')
    if qkv:
        k(f's_branch {name}_ln')
        k.label(f'{name}_now')
        k('s_waitcnt vmcnt(0)')
        k.label(f'{name}_ln')
    k(f'''v_mov_b32 v28, 0x3f803f80
    v_mov_b32 v30, 0
    v_mov_b32 v31, 0
    v_mov_b32 v32, 0
    v_mov_b32 v33, 0''')
    k.stamp(63)
    def w_more(s, tag):
        k(f's_cmp_eq_u32 s33, 3\ns_cbranch_scc1 {name}_nw{tag}')
        if len(wq) >= 7: w_wait(wq[0])
        w_issue(s)
        k.label(f'{name}_nw{tag}')
    for i in range(56):
        if qkv and i in (0, 28): w_more(2 + i//28, f'd{i}')
        k(f'v_dot2c_f32_bf16 v{30+(i&1)}, v{X+i}, v28')
        k(f'v_dot2c_f32_bf16 v{32+(i&1)}, v{X+i}, v{X+i}')
    if not qkv:
        for s in range(11, 14): k('\n'.join(wload(s)))
    k('s_nop 2\nv_add_f32 v30, v30, v31\nv_add_f32 v32, v32, v33\ns_nop 1')
    if qkv:
        for p in ('[1,0,3,2]', '[2,3,0,1]'):
            k(f'''v_add_f32_dpp v30, v30, v30 quad_perm:{p} row_mask:0xf bank_mask:0xf
            v_add_f32_dpp v32, v32, v32 quad_perm:{p} row_mask:0xf bank_mask:0xf
            s_nop 1''')
    else:
        for sw in ('v_permlane16_swap_b32', 'v_permlane32_swap_b32'):
            k(f'''v_mov_b32 v31, v30
            v_mov_b32 v33, v32
            s_nop 1
            {sw} v31, v30
            {sw} v33, v32
            s_nop 1
            v_add_f32 v30, v30, v31
            v_add_f32 v32, v32, v33''')
    k(f'''v_mul_f32 v30, {hex(f2u(1/448))}, v30
    v_mul_f32 v32, {hex(f2u(1/448))}, v32
    v_fma_f32 v32, -v30, v30, v32
    v_max_f32 v32, 0, v32
    v_add_f32 v32, {hex(f2u(1e-5))}, v32
    v_rsq_f32 v34, v32
    s_nop 0
    v_mul_f32 v36, v30, v34
    v_sub_f32 v36, 0, v36
    v_mov_b32 v35, v34
    v_mov_b32 v37, v36''')
    if qkv:
        k(f'''v_lshlrev_b32 v38, 1, v6
        v_xor_b32 v38, v38, v5
        v_lshlrev_b32 v38, 4, v38
        v_lshl_add_u32 v38, v6, 8, v38''')
    else:
        k('v_lshlrev_b32 v38, 4, v0')
    k(f'''s_mul_i32 s41, s33, 14336
    v_add_u32 v38, s41, v38''')
    for s in range(14):
        for j in range(4):
            r = X + 4*s + j; t = 40 + 2*(j & 1)
            k(f'''v_lshlrev_b32 v{t}, 16, v{r}
            v_and_b32 v{t+1}, 0xffff0000, v{r}
            v_pk_fma_f32 v[{t}:{t+1}], v[{t}:{t+1}], v[34:35], v[36:37]
            v_cvt_pk_bf16_f32 v{r}, v{t}, v{t+1}''')
        k(f'ds_write_b128 v38, v[{X+4*s}:{X+4*s+3}] offset:{1024*s}')
        if qkv and s % 3 == 0: w_more(4 + s//3, f'n{s}')
    if qkv:
        k(f'''v_lshlrev_b32 v39, 1, v3
        v_xor_b32 v39, v39, v2
        v_lshlrev_b32 v39, 4, v39
        v_lshl_add_u32 v39, v3, 8, v39''')
    else:
        k('v_lshlrev_b32 v39, 4, v0')
    k.stamp(63)
    k('s_waitcnt lgkmcnt(0)\ns_barrier')
    k.stamp(63)
    if qkv:
        k(f's_cmp_eq_u32 s33, 3\ns_cbranch_scc1 {name}_pf')
    if qkv:
        for i in range(64): k(f'v_mov_b32 v{ACC+i}, 0')
    else:
        for j in range(8):
            r = j >> 1; f = 2*(j & 1)
            k(f'v_lshlrev_b32 v{ACC+f*4+r}, 16, v{20+j}\nv_and_b32 v{ACC+(f+1)*4+r}, 0xffff0000, v{20+j}')
        for tt in range(1, 4):
            for i in range(16): k(f'v_mov_b32 v{ACC+tt*16+i}, v{ACC+i}')
    BF = 128
    def bread(s):
        return [f'ds_read_b128 v[{BF+(s&1)*16+tt*4}:{BF+(s&1)*16+tt*4+3}], v39 offset:{tt*14336+s*1024}' for tt in range(4)]
    RW = 160
    def stage(s): return [f'v_accvgpr_read_b32 v{RW+i}, a{s*16+i}' for i in range(16)]
    wq0 = list(wq)
    def body(flip, tag):
        wq[:] = wq0
        k('\n'.join(bread(0)))
        w_wait(0)
        k('\n'.join(stage(0) + perm_ops(RW, AF, 28, 29)))
        for s in range(14):
            cur = s & 1
            if s < 13: w_wait(s+1)
            k('s_waitcnt lgkmcnt(0)')
            if s < 13: k('\n'.join(bread(s+1)))
            if s % 2 == 0: k.stamp(63)
            m = []
            for tt in range(4):
                for f in range(4):
                    a = f'v[{AF+cur*16+4*f}:{AF+cur*16+4*f+3}]'; b = f'v[{BF+cur*16+tt*4}:{BF+cur*16+tt*4+3}]'
                    c = f'v[{ACC+(tt*4+f)*4}:{ACC+(tt*4+f)*4+3}]'
                    m.append(f'v_mfma_f32_16x16x32_bf16 {c}, {b}, {a}, {c}' if flip else f'v_mfma_f32_16x16x32_bf16 {c}, {a}, {b}, {c}')
            fill = stage(s+1) + perm_ops(RW, AF + (1-cur)*16, 28, 29) if s < 13 else []
            k('\n'.join(interleave(m, fill)))
            if s + 9 <= 13:
                if len(wq) >= 7: w_wait(wq[0])
                w_issue(s + 9)
        k('s_nop 7')
        k.stamp(63)
    A = lambda tt, f, r: ACC + (tt*4+f)*4 + r
    if qkv:
        k(f's_cmp_ge_u32 s34, 14\ns_cbranch_scc1 {name}_v')
        body(False, 'qk')
        k(f'''s_cmp_ge_u32 s34, 7
        s_cselect_b32 s42, 7, 0
        s_cselect_b32 s43, {hex(KF)}, 0
        s_sub_u32 s42, s34, s42
        s_lshl_b32 s42, s42, 4
        s_lshl_b32 s44, s31, 12
        s_add_u32 s43, s43, s44
        v_lshl_add_u32 v16, v3, 2, s42''')
        for r in range(4):
            k(f'''v_add_u32 v17, {r}, v16
            v_mul_u32_u24 v18, 147, v17
            v_lshrrev_b32 v18, 10, v18
            v_mul_u32_u24 v19, 7, v18
            v_sub_u32 v19, v17, v19
            v_lshlrev_b32 v{20+r}, 17, v18
            v_lshrrev_b32 v17, 2, v19
            v_lshl_add_u32 v{20+r}, v17, 10, v{20+r}
            v_bfe_u32 v17, v19, 1, 1
            v_lshl_add_u32 v{20+r}, v17, 9, v{20+r}
            v_and_b32 v17, 1, v19
            v_lshl_add_u32 v{20+r}, v17, 3, v{20+r}
            v_lshl_add_u32 v{20+r}, v2, 4, v{20+r}''')
        sc = f2u(math.log2(math.e)/math.sqrt(28))
        k(f's_mov_b32 s45, {hex(sc)}\ns_cmp_ge_u32 s34, 7\ns_cbranch_scc1 {name}_nosc')
        for i in range(64): k(f'v_mul_f32 v{ACC+i}, s45, v{ACC+i}')
        k.label(f'{name}_nosc')
        n = 0
        for tt in range(4):
            for r in range(4):
                t = 24 + 2*(n % 8); n += 1
                k(f'''v_cvt_pk_bf16_f32 v{t}, v{A(tt,0,r)}, v{A(tt,1,r)}
                v_cvt_pk_bf16_f32 v{t+1}, v{A(tt,2,r)}, v{A(tt,3,r)}
                buffer_store_dwordx2 v[{t}:{t+1}], v{20+r}, s[20:23], s43 offen offset:{(tt>>1)*2048+(tt&1)*256}''')
        k.stamp(63, True)
        k('s_endpgm')
        k.label(f'{name}_v')
        body(True, 'v')
        k(f'''s_sub_u32 s42, s34, 14
        s_lshl_b32 s42, s42, 4
        s_lshl_b32 s43, s31, 12
        s_add_u32 s43, s43, {hex(VF)}
        v_add_u32 v17, s42, v2
        v_mul_u32_u24 v18, 147, v17
        v_lshrrev_b32 v18, 10, v18
        v_mul_u32_u24 v19, 7, v18
        v_sub_u32 v19, v17, v19
        v_lshlrev_b32 v20, 17, v18
        v_lshl_add_u32 v20, v19, 6, v20
        v_and_b32 v17, 1, v3
        v_lshl_add_u32 v20, v17, 9, v20
        v_lshrrev_b32 v17, 1, v3
        v_lshl_add_u32 v20, v17, 3, v20''')
        n = 0
        for tt in range(4):
            for f in range(4):
                t = 24 + 2*(n % 8); n += 1
                k(f'''v_cvt_pk_bf16_f32 v{t}, v{A(tt,f,0)}, v{A(tt,f,1)}
                v_cvt_pk_bf16_f32 v{t+1}, v{A(tt,f,2)}, v{A(tt,f,3)}
                buffer_store_dwordx2 v[{t}:{t+1}], v{20}, s[20:23], s43 offen offset:{f*16+(tt>>1)*2048+(tt&1)*1024}''')
    else:
        body(False, 'g')
        c0 = -2*math.log2(math.e)*math.sqrt(2/math.pi); c1 = c0*0.044715
        k(f'''v_mov_b32 v16, {hex(f2u(c0))}
        v_mov_b32 v17, v16
        v_mov_b32 v18, {hex(f2u(c1))}
        v_mov_b32 v19, v18
        v_mov_b32 v4, 1.0
        v_mov_b32 v5, 1.0
        s_lshl_b32 s40, s31, 2
        s_mul_i32 s40, s40, {56*1024}
        s_lshl_b32 s41, s34, 11
        s_add_u32 s43, s40, s41
        v_lshlrev_b32 v20, 4, v0''')
        for tt in range(4):
            b = ACC + tt*16
            for h in range(2):
                prs = [b + 8*h + 2*i for i in range(4)]
                T = [24 + 2*i for i in range(4)]
                for p, t in zip(prs, T): k(f'v_pk_mul_f32 v[{t}:{t+1}], v[{p}:{p+1}], v[{p}:{p+1}]')
                for p, t in zip(prs, T): k(f'v_pk_fma_f32 v[{t}:{t+1}], v[{t}:{t+1}], v[18:19], v[16:17]')
                for p, t in zip(prs, T): k(f'v_pk_mul_f32 v[{t}:{t+1}], v[{t}:{t+1}], v[{p}:{p+1}]')
                for t in range(24, 32): k(f'v_exp_f32 v{t}, v{t}')
                for p, t in zip(prs, T): k(f'v_pk_add_f32 v[{t}:{t+1}], v[{t}:{t+1}], v[4:5]')
                for t in range(24, 32): k(f'v_rcp_f32 v{t}, v{t}')
                for p, t in zip(prs, T): k(f'v_pk_mul_f32 v[{p}:{p+1}], v[{p}:{p+1}], v[{t}:{t+1}]')
            for sp in range(2):
                t = 32 + 8*(tt & 1) + 4*sp
                for j in range(4):
                    r = 2*sp + (j >> 1); f = 2*(j & 1)
                    k(f'v_cvt_pk_bf16_f32 v{t+j}, v{A(tt,f,r)}, v{A(tt,f+1,r)}')
                k(f'buffer_store_dwordx4 v[{t}:{t+3}], v20, s[20:23], s43 offen offset:{sp*1024}')
            if tt < 3: k(f's_add_u32 s43, s43, {56*1024}')
    k.stamp(63, True)
    k.label(f'{name}_end')
    k('s_endpgm')
    if qkv:
        k.label(f'{name}_pf')
        k(f'''s_load_dwordx2 s[4:5], s[0:1], {ARG['wo']}
        s_load_dwordx2 s[6:7], s[0:1], {ARG['w1']}
        s_load_dwordx2 s[10:11], s[0:1], {ARG['w2']}
        v_lshlrev_b32 v22, 4, v0
        s_waitcnt lgkmcnt(0)''')
        k.srd(20, 8, 0x1800000)
        k(f's_cmp_lg_u32 s92, 223\ns_cbranch_scc1 {name}_nz\nv_mov_b32 v24, 0\nv_mov_b32 v25, 0\nv_mov_b32 v26, 0\nv_mov_b32 v27, 0\ns_mov_b32 s45, 0x1700000')
        for i in range(12): k(f'buffer_store_dwordx4 v[24:27], v22, s[20:23], s45 offen\ns_add_u32 s45, s45, 1024')
        k.label(f'{name}_nz')
        for u in range(4):
            L = f'{name}_u{u}'
            k(f'''s_lshl_b32 s45, s92, 2
            s_add_u32 s45, s45, {u}
            s_cmp_ge_u32 s45, 882
            s_cbranch_scc1 {L}_done
            s_cmp_ge_u32 s45, 784
            s_cbranch_scc1 {L}_wo
            s_cmp_ge_u32 s45, 392
            s_cbranch_scc1 {L}_w2''')
            for tag, ptr, base, rs, rows, ns, dst, nat in (('w1', 6, 0, 3584, 448, 14, PW1, False), ('w2', 10, 392, 896, 1792, 56, PW2, False), ('wo', 4, 784, 896, 448, 14, PWO, True)):
                if tag != 'w1': k.label(f'{L}_{tag}')
                k.srd(16, ptr, rows*rs)
                k(f'''s_sub_u32 s46, s45, {base}
                s_mul_i32 s47, s46, {-(-65536//ns)}
                s_lshr_b32 s47, s47, 16
                s_mul_i32 s48, s47, {ns}
                s_sub_u32 s48, s46, s48
                s_lshl_b32 s49, s46, 12
                s_add_u32 s{50+u}, s49, {hex(dst)}
                s_lshl_b32 s47, s47, 7''')
                if nat: k(f's_mul_i32 s49, s48, {32*rs}')
                else: k(f's_lshr_b32 s49, s48, 1\ns_mul_i32 s49, s49, {64*rs}\ns_and_b32 s48, s48, 1\ns_mul_i32 s48, s48, {8*rs}\ns_add_u32 s49, s49, s48')
                k(f'''s_add_u32 s49, s49, s47
                v_mul_u32_u24 v4, {rs*(8 if nat else 16)}, v3
                v_lshl_add_u32 v4, v2, 3, v4''')
                for e in range(8):
                    k(f'buffer_load_dwordx2 v[{RAW+u*16+2*e}:{RAW+u*16+2*e+1}], v4, s[16:19], s49 offen')
                    if e < 7: k(f's_add_u32 s49, s49, {rs}')
                k(f's_branch {L}_done')
            k.label(f'{L}_done')
        k.stamp(63)
        for u in range(4):
            k(f's_lshl_b32 s45, s92, 2\ns_add_u32 s45, s45, {u}\ns_cmp_ge_u32 s45, 882\ns_cbranch_scc1 {name}_pfend')
            k(f's_waitcnt vmcnt({0 if u == 0 else 4})')
            k('\n'.join(perm_ops(RAW + u*16, ACC + u*16, 28, 29)))
            k('s_nop 1')
            for f in range(4):
                k(f'buffer_store_dwordx4 v[{ACC+u*16+4*f}:{ACC+u*16+4*f+3}], v22, s[20:23], s{50+u} offen offset:{f*1024}')
        k.label(f'{name}_pfend')
        k.stamp(63)
        k('s_waitcnt vmcnt(0)') if __import__('os').environ.get('STAMP') else None
        k.stamp(63, True)
        k('s_endpgm')
    return name, header(name) + '\n' + k.text(), desc(name, 256, 224), (256, 256, 57344)
```

```python
from common import *
import os

NWV = int(os.environ.get('NWV', 4))
NT = os.environ.get('NT', '')
TPW = 64//NWV
CODE2 = 29*1024
CODE3 = int(os.environ.get('CODE3', 17))*1024
def attn():
    name = 'k2_attn_kernel'
    k = K(name)
    Q, O, S, P, KB, VB, M = 16, 48, 112, 144, 160, 192, 224
    k(f'''s_cmp_ge_u32 s2, 256
    s_cbranch_scc1 {name}_end
    s_load_dwordx2 s[8:9], s[0:1], {ARG['ws']}
    v_lshrrev_b32 v1, 6, v0
    v_mov_b32 v15, v0
    v_and_b32 v0, 63, v0
    s_and_b32 s35, s2, 7
    s_lshr_b32 s36, s2, 3
    v_readfirstlane_b32 s33, v1
    s_lshr_b32 s37, s36, 4
    s_lshl_b32 s31, s35, 1
    s_add_u32 s31, s31, s37
    s_and_b32 s32, s36, 15
    v_lshlrev_b32 v2, 4, v0
    s_lshl_b32 s38, s31, 17
    s_lshl_b32 s39, s32, 13
    s_add_u32 s39, s39, s38
    s_mul_i32 s40, s33, {TPW*2048}
    s_add_u32 s40, s40, s38
    s_mov_b32 s42, 0x0fffffff
    s_mov_b32 s43, 0x0fffffff
    v_cmp_gt_u32 vcc, 32, v0
    s_nop 1
    v_cndmask_b32 v3, 0, -1, vcc
    s_mov_b32 s47, 0''')
    k.code_prefetch(CODE2, 236)
    k('s_waitcnt lgkmcnt(0)')
    k.stamp(14)
    k(f'''s_mul_i32 s37, s36, 37
    s_lshr_b32 s37, s37, 8
    s_mul_i32 s38, s37, 7
    s_sub_u32 s56, s36, s38
    s_lshl_b32 s56, s56, 2
    s_add_u32 s56, s56, s33
    s_mul_i32 s57, s56, {14*4096}''')
    k.srd(64, 8, 392*4096, PW1)
    k.srd(68, 8, 392*4096, PW2)
    k('s_lshl_b32 s58, s36, 2\ns_add_u32 s58, s58, s33\ns_mul_i32 s58, s58, 14336')
    k.srd(12, 8, 0x200000, QF)
    k.srd(16, 8, 0x200000, KF)
    k.srd(20, 8, 0x200000, VF)
    k.srd(24, 8, 128*14336, OF)
    for c in range(4):
        for m in range(2):
            if c == 2 and m == 0: k('s_add_u32 s39, s39, 4096')
            k(f'buffer_load_dwordx4 v[{Q+(c*2+m)*4}:{Q+(c*2+m)*4+3}], v2, s[12:15], s39 offen offset:{(c&1)*2048+m*1024}')
    for i in range(32): k(f'v_mov_b32 v{VB+i}, 0x3f803f80')
    def kv(buf, sreg):
        return [f'buffer_load_dwordx4 v[{KB+buf*8}:{KB+buf*8+3}], v2, s[16:19], {sreg} offen',
                f'buffer_load_dwordx4 v[{KB+buf*8+4}:{KB+buf*8+7}], v2, s[16:19], {sreg} offen offset:1024',
                's_mov_b64 exec, s[42:43]',
                f'buffer_load_dwordx4 v[{VB+buf*8}:{VB+buf*8+3}], v2, s[20:23], {sreg} offen',
                f'buffer_load_dwordx4 v[{VB+buf*8+4}:{VB+buf*8+7}], v2, s[20:23], {sreg} offen offset:1024',
                's_mov_b64 exec, -1']
    k('s_mov_b32 s41, s40')
    for j in range(3):
        k('\n'.join(kv(j, 's41')))
        k('s_add_u32 s41, s41, 2048')
    for i in range(64): k(f'v_mov_b32 v{O+i}, 0')
    for i in range(16): k(f'v_mov_b32 v{P+i}, 0')
    def kmask(buf): return [f'v_and_b32 v{KB+buf*8+6}, v3, v{KB+buf*8+6}', f'v_and_b32 v{KB+buf*8+7}, v3, v{KB+buf*8+7}']
    def qk(buf, c, sb):
        d = f'v[{S+sb*16}:{S+sb*16+15}]'
        return [f'v_mfma_f32_32x32x16_bf16 {d}, v[{KB+buf*8}:{KB+buf*8+3}], v[{Q+c*8}:{Q+c*8+3}], 0',
                f'v_mfma_f32_32x32x16_bf16 {d}, v[{KB+buf*8+4}:{KB+buf*8+7}], v[{Q+c*8+4}:{Q+c*8+7}], {d}']
    def pv(buf, c, pb):
        d = f'v[{O+c*16}:{O+c*16+15}]'
        return [f'v_mfma_f32_32x32x16_bf16 {d}, v[{VB+buf*8}:{VB+buf*8+3}], v[{P+pb*8}:{P+pb*8+3}], {d}',
                f'v_mfma_f32_32x32x16_bf16 {d}, v[{VB+buf*8+4}:{VB+buf*8+7}], v[{P+pb*8+4}:{P+pb*8+7}], {d}']
    k.stamp(14)
    k('s_waitcnt vmcnt(8)')
    k.stamp(14)
    for c in range(4):
        k(f'v_and_b32 v{Q+c*8+6}, v3, v{Q+c*8+6}\nv_and_b32 v{Q+c*8+7}, v3, v{Q+c*8+7}')
    k('\n'.join(kmask(0)))
    k('s_nop 1')
    k('\n'.join(qk(0, 0, 0)))
    k('s_nop 7\ns_nop 3')
    q = ['kv0']*4 + ['kv1']*4 + ['kv2']*4
    del q[:4]
    for j in range(TPW):
        jj = j % 4
        for c in range(4):
            sb = c & 1
            nb = (jj + (c == 3)) % 4
            pre = []
            if c == 3 and j < TPW-1:
                last = max(i for i, t in enumerate(q) if t == f'kv{j+1}')
                pre = [f's_waitcnt vmcnt({len(q)-1-last})'] + kmask(nb); del q[:last+1]
            a = qk(nb, (c+1) & 3, 1-sb)
            b = pv((jj - (c == 0)) % 4, (c-1) & 3, 1-sb)
            ex = [f'v_exp_f32 v{S+sb*16+i}, v{S+sb*16+i}' for i in range(16)]
            cv = [f'v_cvt_pk_bf16_f32 v{P+sb*8+i}, v{S+sb*16+2*i}, v{S+sb*16+2*i+1}' for i in range(8)]
            if j == TPW-1 and c == 3: a = ['s_nop 0', 's_nop 0']
            seq = pre + ex[0:2] + [a[0]] + ex[2:7] + [cv[0], cv[1], a[1]] + ex[7:11] + [cv[2], cv[3], cv[4], b[0]] + ex[11:16] + [cv[5], cv[6], b[1], cv[7]]
            if c == 1 and j + 3 < TPW:
                seq = seq[:3] + kv((jj+3) % 4, 's41') + ['s_add_u32 s41, s41, 2048'] + seq[3:]; q += [f'kv{j+3}']*4
            if c == 0 and j >= 2 and os.environ.get('PFW2'):
                w = [f'buffer_load_dwordx4 v[232:235], v2, s[68:71], s58 offen', 's_add_u32 s58, s58, 1024']
                seq = seq[:3] + w + seq[3:]; q += ['p']
            if c == 2 and j < 14:
                w = [f's_add_u32 s30, s57, {j*4096}'] + [f'buffer_load_dwordx4 a[{j*16+4*f}:{j*16+4*f+3}], v2, s[64:67], s30 offen offset:{f*1024}' + NT for f in range(4)]
                seq = seq[:3] + w + seq[3:]; q += ['w']*4
            k('\n'.join(seq))
    k('s_nop 1')
    k('\n'.join(pv(3, 3, 1)))
    k.stamp(14)
    k.label(f'{name}_comb')
    k(f'''v_lshrrev_b32 v4, 5, v0
    v_and_b32 v5, 31, v0
    v_lshlrev_b32 v4, 11, v4
    v_lshl_add_u32 v4, v5, 4, v4
    s_lshl_b32 s45, s33, 14
    v_add_u32 v4, s45, v4
    s_nop 7
    s_nop 7''')
    for c in range(4):
        for j in range(4):
            k(f'ds_write_b128 v4, v[{O+c*16+4*j}:{O+c*16+4*j+3}] offset:{j*4096+c*512}')
    k(f'''v_and_b32 v5, 127, v15
    v_lshlrev_b32 v6, 4, v5
    v_xor_b32 v7, 1024, v6
    v_add_u32 v12, 0x10000, v6
    v_add_u32 v13, 0x10000, v7
    s_waitcnt lgkmcnt(0)
    s_barrier''')
    k.stamp(14)
    NG = 8//(NWV//2)
    LS = S + 16
    for w in range(NWV):
        k(f'ds_read_b32 v{S+w}, v6 offset:{w*16384+7*2048}' if w < 4 else f'ds_read_b32 v{S+w}, v12 offset:{(w-4)*16384+7*2048}')
    for w in range(NWV):
        k(f'ds_read_b32 v{LS+w}, v7 offset:{w*16384+7*2048}' if w < 4 else f'ds_read_b32 v{LS+w}, v13 offset:{(w-4)*16384+7*2048}')
    k(f'''s_lshr_b32 s46, s33, 1
    s_lshl_b32 s45, s46, 11
    v_add_u32 v6, s45, v6
    v_add_u32 v12, s45, v12
    s_waitcnt lgkmcnt(0)''')
    for i in range(NG):
        for w in range(NWV):
            r = KB + (i*NWV+w)*4
            k(f'ds_read_b128 v[{r}:{r+3}], v{6 if w < 4 else 12} offset:{(w&3)*16384+i*(NWV//2)*2048}')
    for w in range(1, NWV): k(f'v_add_f32 v{S}, v{S}, v{S+w}\nv_add_f32 v{LS}, v{LS}, v{LS+w}')
    k(f'''v_mov_b32 v8, v{S}
    v_mov_b32 v{S}, v{LS}
    s_cmp_lg_u32 s47, 0
    s_cbranch_scc1 {name}_ok
    v_mov_b32 v9, {hex(f2u(2.0**-60))}
    v_mov_b32 v10, {hex(f2u(2.0**60))}
    v_cmp_ge_f32 s[48:49], v8, v9
    v_cmp_le_f32 s[50:51], v8, v10
    v_cmp_ge_f32 s[52:53], v{S}, v9
    v_cmp_le_f32 s[54:55], v{S}, v10
    s_and_b64 s[48:49], s[48:49], s[50:51]
    s_and_b64 s[52:53], s[52:53], s[54:55]
    s_and_b64 s[48:49], s[48:49], s[52:53]
    s_cmp_eq_u64 s[48:49], -1
    s_cbranch_scc0 {name}_slow''')
    k.label(f'{name}_ok')
    k(f'''v_rcp_f32 v8, v8
    v_lshrrev_b32 v9, 4, v5
    v_mul_u32_u24 v9, 14336, v9
    v_and_b32 v10, 15, v5
    v_lshl_add_u32 v9, v10, 4, v9
    s_mul_i32 s48, s32, {8*14336}
    s_mul_i32 s49, s31, 7
    s_add_u32 s49, s49, s46
    s_waitcnt lgkmcnt(0)''')
    for i in range(NG):
        if i == NG-1: k.stamp(14, True)
        if i == NG-1: k(f's_cmp_eq_u32 s46, {NWV//2-1}\ns_cbranch_scc1 {name}_pub')
        r = KB + i*NWV*4
        for w in range(1, NWV):
            k(f'v_pk_add_f32 v[{r}:{r+1}], v[{r}:{r+1}], v[{r+4*w}:{r+4*w+1}]\nv_pk_add_f32 v[{r+2}:{r+3}], v[{r+2}:{r+3}], v[{r+4*w+2}:{r+4*w+3}]')
        k(f'''v_mul_f32 v{r}, v8, v{r}
        v_mul_f32 v{r+1}, v8, v{r+1}
        v_mul_f32 v{r+2}, v8, v{r+2}
        v_mul_f32 v{r+3}, v8, v{r+3}
        v_cvt_pk_bf16_f32 v{r+4}, v{r}, v{r+1}
        v_cvt_pk_bf16_f32 v{r+5}, v{r+2}, v{r+3}
        s_lshr_b32 s50, s49, 3
        s_lshl_b32 s50, s50, 10
        s_bfe_u32 s51, s49, 0x20001
        s_lshl_b32 s51, s51, 8
        s_and_b32 s52, s49, 1
        s_lshl_b32 s52, s52, 3
        s_add_u32 s50, s50, s51
        s_add_u32 s50, s50, s52
        s_add_u32 s50, s50, s48
        buffer_store_dwordx2 v[{r+4}:{r+5}], v9, s[24:27], s50 offen sc1
        s_add_u32 s49, s49, {NWV//2}''')
    k(f's_branch {name}_pub')
    k.label(f'{name}_slow')
    k('s_waitcnt lgkmcnt(0) vmcnt(0)\ns_barrier\ns_mov_b32 s47, 1\ns_mov_b32 s41, s40\ns_mov_b32 s44, 0')
    for i in range(64): k(f'v_mov_b32 v{O+i}, 0')
    for i in range(32): k(f'v_mov_b32 v{VB+i}, 0x3f803f80')
    for c in range(4): k(f'v_mov_b32 v{M+c}, {hex(f2u(-3.0e38))}')
    k.label(f'{name}_sloop')
    k('\n'.join(kv(0, 's41')))
    k('s_add_u32 s41, s41, 2048\ns_waitcnt vmcnt(0)')
    k('\n'.join(kmask(0)))
    for c in range(4):
        k('s_nop 1')
        k('\n'.join(qk(0, c, 0)))
        k('s_nop 7\ns_nop 7')
        k(f'v_max_f32 v4, v{S}, v{S+1}')
        for i in range(2, 16, 2): k(f'v_max3_f32 v4, v4, v{S+i}, v{S+i+1}')
        k(f'''v_mov_b32 v5, v4
        s_nop 1
        v_permlane32_swap_b32 v5, v4
        s_nop 1
        v_max3_f32 v4, v4, v5, v{M+c}
        v_sub_f32 v5, v{M+c}, v4
        v_exp_f32 v5, v5
        v_mov_b32 v{M+c}, v4''')
        for i in range(16): k(f'v_mul_f32 v{O+c*16+i}, v5, v{O+c*16+i}')
        for i in range(16): k(f'v_sub_f32 v{S+i}, v{S+i}, v4')
        for i in range(16): k(f'v_exp_f32 v{S+i}, v{S+i}')
        k('s_nop 0')
        for i in range(8): k(f'v_cvt_pk_bf16_f32 v{P+i}, v{S+2*i}, v{S+2*i+1}')
        k('s_nop 1')
        k('\n'.join(pv(0, c, 0)))
        k('s_nop 7\ns_nop 7')
    k(f'''s_add_u32 s44, s44, 1
    s_cmp_lt_u32 s44, {TPW}
    s_cbranch_scc1 {name}_sloop
    v_and_b32 v5, 31, v0
    v_lshlrev_b32 v5, 2, v5
    v_add_u32 v5, {NWV*16384}, v5
    s_lshl_b32 s45, s33, 9
    v_add_u32 v4, s45, v5''')
    for c in range(4): k(f'ds_write_b32 v4, v{M+c} offset:{c*128}')
    return k, name, (Q, O, S, P, KB, VB, M)

def attn_full():
    k, name, (Q, O, S, P, KB, VB, M) = attn()
    k('s_waitcnt lgkmcnt(0)\ns_barrier')
    for c in range(4):
        for w in range(NWV):
            k(f'ds_read_b32 v{KB+c*NWV+w}, v5 offset:{w*512+c*128}')
    k('s_waitcnt lgkmcnt(0)\ns_barrier')
    for c in range(4):
        k(f'v_max_f32 v4, v{KB+c*NWV}, v{KB+c*NWV+1}')
        for w in range(2, NWV, 2): k(f'v_max3_f32 v4, v4, v{KB+c*NWV+w}, v{KB+c*NWV+w+1}')
        k(f'''v_sub_f32 v4, v{M+c}, v4
        v_exp_f32 v4, v4
        s_nop 0''')
        for i in range(16): k(f'v_mul_f32 v{O+c*16+i}, v4, v{O+c*16+i}')
    k(f's_branch {name}_comb')
    k.label(f'{name}_pub')
    from fused import fused, CNT
    k.srd(4, 8, 96*128, CNT)
    k(f'''s_waitcnt vmcnt(0)
    s_barrier
    s_cmp_lg_u32 s33, 0
    s_cbranch_scc1 {name}_pub2
    s_lshl_b32 s42, s32, 7
    s_add_u32 s42, s42, {64*128}
    v_mov_b32 v4, 1
    v_mov_b32 v5, 0
    s_mov_b64 exec, 1
    buffer_atomic_add v4, v5, s[4:7], s42 offen sc1
    s_mov_b64 exec, -1''')
    k.label(f'{name}_pub2')
    k(f's_cmp_ge_u32 s36, 28\ns_cbranch_scc1 {name}_end')
    mlp = fused(merged=True)
    txt = k.text() + '\n' + mlp + f'\n{name}_end:\n    s_endpgm'
    return name, header(name) + '\n' + txt, desc(name, 256, 224), (256, 64*NWV, NWV*16384 + 4096)
```

```python
import sys
from common import *
from lngemm import ln_gemm
from attn import attn_full
ks = [ln_gemm('qkv'), attn_full()]
ref = open('sequential_preLN__mha_block__dense_activation_gelu__prompt.s.ref').read().split('\n')
head = [l for l in ref if l.startswith(';') and '@launch' not in l and 'Override' not in l and 'grid=ceil' not in l]
out = head[:]
for n, _, _, (g, b, l) in ks:
    out.append(f'; @launch kernel={n} grid=({g},1,1) block=({b},1,1) lds={l}')
out += [
 '; k1_qkv_kernel : LayerNorm(x) @ wqkv -> Q (pre-scaled by log2e/sqrt(28)), K, V^T in MFMA fragment order in d_ws;',
 ';                 its spare waves repack wo / w1 / w2 into fragment order and zero the hand-off counters.',
 '; k2_attn_kernel: attention per (head, 128 queries), then h = x + O @ wo, g = gelu(LN(h) @ w1 + b1), out = h + g @ w2 + b2.',
 ';                 Stages hand data over through d_ws (sc1 stores, drained, one counter add per workgroup, sc1 poll and loads).',
 ';                 Softmax first runs with shift 0; every row sum is then checked to lie in [2^-60, 2^60], and the',
 ';                 workgroup otherwise redoes its rows with the online running row maximum.',
]
out += ['.amdgcn_target "amdgcn-amd-amdhsa--gfx950"', '.text']
for n, t, _, _ in ks: out.append(t)
out.append('.section .rodata,"a"')
for n, _, d, _ in ks: out.append(d)
path = sys.argv[1] if len(sys.argv) > 1 else 'sequential_preLN__mha_block__dense_activation_gelu__prompt.s'
open(path, 'w').write('\n'.join(out) + '\n')
```
